```python
import torch

def _softmax(x, axis=-1):
    return torch.softmax(x, dim=axis)

def _gelu(x):
    return torch.nn.functional.gelu(x, approximate='tanh')

def _silu(x):
    return torch.nn.functional.silu(x)

def _sigmoid(x):
    return torch.sigmoid(x)

def _layernorm(x, axis=-1, eps=1e-05):
    m = x.mean(dim=axis, keepdim=True)
    v = x.var(dim=axis, keepdim=True, unbiased=False)
    return (x - m) / torch.sqrt(v + eps)

def _scatter_add(tgt, idx, src, axis=0):
    return tgt.clone().index_add_(axis, idx, src)

def _segment_sum(src, seg, n):
    out = torch.zeros((n,) + src.shape[1:], dtype=src.dtype)
    return out.index_add_(0, seg, src)

def _pad(x, pw):
    flat = tuple((v for pair in reversed(pw) for v in pair))
    return torch.nn.functional.pad(x, flat)
kernel_name = 'interleave_layers__memory_aug_recurrent_mem_tr__softmax_full_mha__prompt'

def setup_inputs():

    _w = lambda a: (lambda t: t.to(torch.bfloat16) if t.is_floating_point() else t)(torch.as_tensor(a))

    def _A_setup():
        B, S, Dm = (1, 2048, 512)
        H, Dh = (32, 128)
        M, seg = (8, 32)
        seg = min(seg, S)
        S = S // seg * seg
        return {'x': _w((lambda *s: torch.randn(*s, dtype=torch.bfloat16) * 0.05)(B, S, Dm)), 'mem0': _w((lambda *s: torch.randn(*s, dtype=torch.bfloat16) * 0.2)(B, M, Dm)), 'Wq': _w((lambda *s: torch.randn(*s, dtype=torch.bfloat16) * 1.6)(Dm, H, Dh) * Dm ** (-0.5)), 'Wk': _w((lambda *s: torch.randn(*s, dtype=torch.bfloat16) * 1.6)(Dm, H, Dh) * Dm ** (-0.5)), 'Wv': _w((lambda *s: torch.randn(*s, dtype=torch.bfloat16) * 0.2)(Dm, H, Dh) * Dm ** (-0.5)), 'Wo': _w((lambda *s: torch.randn(*s, dtype=torch.bfloat16) * 0.2)(H, Dh, Dm) * (H * Dh) ** (-0.5)), 'seg_len': seg}
    _A_in = _A_setup()

    def _B_setup():
        B, S, D = (1, 2048, 512)
        return {'x': _w((lambda *s: torch.randn(*s, dtype=torch.bfloat16) * 0.05)(B, S, D)), 'wqkv': _w((lambda *s: torch.randn(*s, dtype=torch.bfloat16) * 0.05)(D, 3 * D)), 'wo': _w((lambda *s: torch.randn(*s, dtype=torch.bfloat16) * 0.05)(D, D))}
    _B_in = _B_setup()
    return {'A_x': _A_in['x'], 'A_mem0': _A_in['mem0'], 'A_Wq': _A_in['Wq'], 'A_Wk': _A_in['Wk'], 'A_Wv': _A_in['Wv'], 'A_Wo': _A_in['Wo'], 'A_seg_len': _A_in['seg_len'], 'B_x': _B_in['x'], 'B_wqkv': _B_in['wqkv'], 'B_wo': _B_in['wo']}

def reference(A_x, A_mem0, A_Wq, A_Wk, A_Wv, A_Wo, A_seg_len, B_x, B_wqkv, B_wo):

    def _A_ref(x, mem0, Wq, Wk, Wv, Wo, seg_len):
        B, S, Dm = x.shape
        H, Dh = (Wq.shape[1], Wq.shape[2])
        M = mem0.shape[1]
        scale = Dh ** (-0.5)
        n_seg = S // seg_len
        L = M + seg_len
        idx = torch.arange(L)
        mask = (idx[:, None] < M) | (idx[:, None] >= idx[None, :])
        mem = mem0
        outs = []
        for s in range(n_seg):
            xs = x[:, s * seg_len:(s + 1) * seg_len, :].clone()
            h = torch.concatenate([mem, xs], axis=1)
            q = torch.einsum('btd,dhe->bhte', h, Wq)
            k = torch.einsum('btd,dhe->bhte', h, Wk)
            v = torch.einsum('btd,dhe->bhte', h, Wv)
            scores = torch.einsum('bhqe,bhke->bhqk', q, k) * scale
            scores = torch.where(mask[None, None], scores, -1000000000.0)
            p = _softmax(scores, axis=-1)
            o = torch.einsum('bhqk,bhke->bhqe', p, v)
            o = torch.einsum('bhte,hed->btd', o, Wo)
            mem = o[:, :M, :].clone()
            outs.append(o[:, M:, :])
        return torch.concatenate(outs, axis=1)

    def _B_ref(x, wqkv, wo):
        B, S, D = x.shape
        H = 32
        Dh = D // H
        qkv = (lambda x, *d: x.permute(*d))((x @ wqkv).reshape(B, S, 3, H, Dh), 2, 0, 3, 1, 4)
        q, k, v = (qkv[0], qkv[1], qkv[2])
        scale = Dh ** (-0.5)
        scores = torch.einsum('bhqd,bhkd->bhqk', q, k) * scale
        p = _softmax(scores, axis=-1)
        o = torch.einsum('bhqk,bhkd->bhqd', p, v)
        return (lambda x, *d: x.permute(*d))(o, 0, 2, 1, 3).reshape(B, S, D) @ wo
    x = A_x
    x = x + _A_ref(_layernorm(x, axis=-1), A_mem0, A_Wq, A_Wk, A_Wv, A_Wo, A_seg_len)
    x = x + _B_ref(_layernorm(x, axis=-1), B_wqkv, B_wo)
    x = x + _A_ref(_layernorm(x, axis=-1), A_mem0, A_Wq, A_Wk, A_Wv, A_Wo, A_seg_len)
    x = x + _B_ref(_layernorm(x, axis=-1), B_wqkv, B_wo)
    return x
```

```python
import re, sys
from collections import deque

def parse_reg(tok):
    tok = tok.strip()
    neg = tok.lstrip('-')
    m = re.fullmatch(r'abs\((.*)\)', neg)
    if m: neg = m.group(1)
    neg = neg.strip('|')
    m = re.fullmatch(r'([vas])(\d+)', neg)
    if m: return [(m.group(1), int(m.group(2)))]
    m = re.fullmatch(r'([vas])\[(\d+):(\d+)\]', neg)
    if m: return [(m.group(1), i) for i in range(int(m.group(2)), int(m.group(3)) + 1)]
    if neg in ('vcc', 'vcc_lo', 'vcc_hi'): return [('x', 'vcc')]
    if neg in ('exec', 'exec_lo', 'exec_hi'): return [('x', 'exec')]
    if neg == 'm0': return [('x', 'm0')]
    return []

TRANS = re.compile(r'v_(exp|log|rcp|rsq|sqrt|sin|cos)_')

class I:
    __slots__ = ('text', 'op', 'ops', 'mods', 'w', 'r', 'kind', 'line', 'passes', 'srcA', 'srcB', 'srcC', 'data', 'dpp', 'target', 'lds')

def parse_inst(text, line):
    t = text.strip()
    sp = t.split(None, 1)
    op = sp[0]
    rest = sp[1] if len(sp) > 1 else ''
    ops = []; cur = ''; depth = 0
    for ch in rest:
        if ch in '[(': depth += 1
        if ch in '])': depth -= 1
        if ch == ',' and depth == 0: ops.append(cur.strip()); cur = ''
        else: cur += ch
    if cur.strip(): ops.append(cur.strip())
    mods = ''
    if ops:
        last = ops[-1].split(None, 1)
        if len(last) > 1 and not op.startswith('s_waitcnt'):
            ops[-1] = last[0]; mods = last[1]
    i = I(); i.text = t; i.op = op; i.ops = ops; i.mods = mods; i.line = line
    i.w = []; i.r = []; i.passes = 0; i.srcA = i.srcB = i.srcC = []; i.data = []; i.target = None
    i.dpp = ('_dpp' in op) or bool(re.search(r'quad_perm|row_(shl|shr|ror|mirror|half_mirror|bcast|newbcast)|wave_', mods))
    i.lds = False
    R = [parse_reg(o) for o in ops]
    if op.startswith('v_mfma') or op.startswith('v_smfmac'):
        i.kind = 'mfma'
        i.passes = 8 if '32x32' in op else 4
        if '4x4x4' in op: i.passes = 2
        i.w = R[0]; i.srcA = R[1]; i.srcB = R[2]
        if op.startswith('v_smfmac'):
            i.srcC = R[0]; i.srcB = R[2] + R[3]
        else: i.srcC = R[3]
        i.r = i.srcA + i.srcB + i.srcC
    elif op.startswith('v_'):
        i.kind = 'valu'
        if op.startswith('v_cmpx'): i.w = R[0] + [('x', 'exec')]; i.r = sum(R[1:], [])
        elif op.startswith('v_permlane') and 'swap' in op: i.w = R[0] + R[1]; i.r = R[0] + R[1]
        elif op.startswith('v_swap'): i.w = R[0] + R[1]; i.r = R[0] + R[1]
        elif re.match(r'v_(add|sub|subrev)_co_|v_(addc|subb|subbrev)_co|v_div_scale|v_mad_u64', op):
            i.w = R[0] + R[1]; i.r = sum(R[2:], [])
        elif op == 'v_nop': pass
        else:
            i.w = R[0]; i.r = sum(R[1:], [])
            if re.match(r'v_(fmac|pk_fmac|dot2c|writelane)', op) or i.dpp or 'd16' in op or 'sdwa' in op: i.r = i.r + R[0]
    elif op.startswith('ds_'):
        i.kind = 'ds'
        if re.match(r'ds_(read|bpermute|permute|swizzle)', op) or '_rtn' in op:
            i.w = R[0]; i.r = sum(R[1:], [])
        else:
            i.r = sum(R, []); i.data = sum(R[1:], [])
    elif op.startswith('buffer_') or op.startswith('global_'):
        i.kind = 'vmem'
        islds = (' lds' in ' ' + mods) or '_lds_' in op
        i.lds = islds
        if op in ('buffer_wbl2', 'buffer_inv'): pass
        elif islds: i.r = sum(R, []) + [('x', 'm0')]
        elif 'load' in op:
            i.w = R[0]; i.r = sum(R[1:], [])
            if 'd16' in op: i.r = i.r + R[0]
        elif 'atomic' in op:
            if op.startswith('global_') and 'sc0' in mods: i.w = R[0]; i.r = sum(R[1:], [])
            elif 'sc0' in mods: i.w = R[0]; i.r = sum(R, [])
            else: i.r = sum(R, [])
        else:
            i.r = sum(R, [])
            i.data = R[0] if op.startswith('buffer_') else R[1]
    elif op.startswith('s_'):
        i.kind = 'salu'
        if op.startswith('s_load') or op.startswith('s_buffer_load') or op in ('s_memtime', 's_memrealtime') or op.startswith('s_atomic'):
            i.kind = 'smem'; i.w = R[0]; i.r = sum(R[1:], [])
        elif op.startswith('s_cmp') or op.startswith('s_bitcmp'): i.r = sum(R, [])
        elif op.startswith('s_cbranch') or op == 's_branch': i.target = ops[0]
        elif op in ('s_waitcnt', 's_nop', 's_barrier', 's_endpgm', 's_sleep', 's_setprio'): pass
        elif 'saveexec' in op: i.w = R[0] + [('x', 'exec')]; i.r = sum(R[1:], [])
        elif op in ('s_setpc_b64',): i.r = R[0]
        else: i.w = R[0] if R else []; i.r = sum(R[1:], [])
    else:
        raise ValueError(f"line {line}: cannot parse {t}")
    i.w = set(i.w); i.r = set(i.r)
    return i

def load(text):
    ins = []; labels = {}
    intext = True
    for ln, raw in enumerate(text.split('\n'), 1):
        s = raw.split(';')[0].split('//')[0].strip()
        if not s: continue
        if s.startswith('.section') or s.startswith('.amdhsa_kernel'): intext = False
        if s == '.text': intext = True; continue
        if not intext or s.startswith('.'): continue
        m = re.fullmatch(r'([\w.$]+):', s)
        if m: labels[m.group(1)] = len(ins); continue
        ins.append(parse_inst(s, ln))
    return ins, labels

def succs(ins, labels, k):
    i = ins[k]
    if i.op == 's_endpgm': return []
    if i.op == 's_branch': return [labels[i.target]]
    if i.op == 's_setpc_b64': return []
    if i.target is not None: return [labels[i.target], k + 1]
    return [k + 1] if k + 1 < len(ins) else []

def states(i):
    if i.op == 's_nop': return int(i.ops[0], 0) + 1
    return 1

def isV(r): return r[0] in 'va'
def isS(r): return r[0] == 's' or r == ('x', 'vcc')

def need(p, c):
    best = (0, '')
    def up(n, why):
        nonlocal best
        if n > best[0]: best = (n, why)
    if p.kind == 'vmem' and p.data and re.search(r'x[34]$', p.op):
        if set(p.data) & c.w: up(2 if c.kind == 'valu' else 1, 'store-data WAR')
    if p.kind == 'valu':
        sw = {r for r in p.w if isS(r)}
        vw = {r for r in p.w if isV(r)}
        if c.kind == 'vmem' and sw & c.r: up(5, 'VALU sgpr->VMEM')
        if c.kind == 'valu':
            if c.dpp and vw & c.r: up(2, 'VALU->DPP')
            if c.dpp and ('x', 'exec') in p.w: up(5, 'exec->DPP')
            if sw & c.r: up(4 if re.match(r'v_(read|write)lane', c.op) else 2, 'VALU sgpr->VALU')
            if re.match(r'v_read(first)?lane', c.op) and vw & c.r: up(1, 'VALU->readlane')
            if TRANS.match(p.op) and not TRANS.match(c.op) and vw & c.r: up(1, 'trans->VALU')
            if c.op.startswith('v_permlane') and vw & c.r: up(2, 'VALU->permlane')
            if ('x', 'exec') in p.w and re.match(r'v_(read|write|perm)', c.op): up(4, 'exec->lane')
            if c.op.startswith('v_div_fmas') and ('x', 'vcc') in p.w: up(4, 'vcc->div_fmas')
        if c.kind == 'mfma':
            if vw & c.r: up(2, 'VALU->MFMA')
            if ('x', 'exec') in p.w: up(4, 'exec->MFMA')
    if p.kind == 'salu' and ('x', 'm0') in p.w and c.kind == 'vmem' and c.lds: up(1, 'm0->ldsdma')
    if p.kind == 'mfma':
        big = {2: 5, 4: 8, 8: 12}[p.passes]; ov = {2: 4, 4: 6, 8: 10}[p.passes]; war = {2: 1, 4: 3, 8: 7}[p.passes]
        if c.kind == 'mfma':
            if p.w & (set(c.srcA) | set(c.srcB)): up(big, 'MFMA D->A/B')
            if p.w & set(c.srcC):
                if p.w == set(c.srcC) and p.op == c.op: up(2 if p.passes == 2 else 0, 'chain')
                else: up(ov, 'MFMA D->C overlap')
            elif p.w & c.w: up(ov, 'MFMA D WAW')
        elif c.kind in ('valu', 'vmem', 'ds'):
            if p.w & (c.r | c.w): up(big, 'MFMA D->VALU/mem')
            if c.kind == 'valu' and set(p.srcC) & c.w: up(war, 'MFMA C WAR')
    return best

def check_hazards(ins, labels):
    preds = [[] for _ in ins]
    for k in range(len(ins)):
        for s in succs(ins, labels, k):
            if s < len(ins): preds[s].append(k)
    errs = []
    for k, c in enumerate(ins):
        if c.kind in ('salu', 'smem'): continue
        seen = {}
        st = [(p, 0) for p in preds[k]]
        while st:
            p, d = st.pop()
            if d >= 12: continue
            if seen.get(p, 99) <= d: continue
            seen[p] = d
            n, why = need(ins[p], c)
            if n > d: errs.append(f"HAZARD {why}: need {n} have {d}: L{ins[p].line} [{ins[p].text}] -> L{c.line} [{c.text}]")
            for q in preds[p]: st.append((q, d + states(ins[p])))
    return errs

def check_waits(ins, labels, entries, maxstates=4000000):
    errs = {}
    seen = set()
    dq = deque((e, (), ()) for e in entries)
    n = 0
    while dq:
        k, vq, lq = dq.pop()
        if (k, vq, lq) in seen: continue
        seen.add((k, vq, lq)); n += 1
        if n > maxstates: errs['x'] = 'WAITCHECK: state limit'; break
        i = ins[k]
        if i.op == 's_waitcnt':
            t = i.text
            m = re.search(r'vmcnt\((\d+)\)', t)
            if m:
                c = int(m.group(1)); vq = vq[len(vq) - c:] if c < len(vq) and c > 0 else (() if c == 0 else vq)
            m = re.search(r'lgkmcnt\((\d+)\)', t)
            if m:
                c = int(m.group(1))
                if c == 0: lq = ()
                elif any(ins[j].kind == 'smem' for j in lq if j >= 0): pass
                elif c < len(lq): lq = lq[len(lq) - c:]
        else:
            touch = i.r | i.w
            for q in (vq, lq):
                for j in q:
                    if j >= 0 and ins[j].w & touch:
                        if not (ins[j].w & i.r) and i.kind == ins[j].kind and i.kind != 'smem': continue
                        errs[(j, k)] = f"WAIT: L{ins[j].line} [{ins[j].text}] outstanding at L{i.line} [{i.text}]"
            if i.kind == 'vmem':
                vq = (vq + ((k if i.w else -1),))[-64:]
                while vq and vq[0] == -1 and False: vq = vq[1:]
            elif i.kind in ('ds', 'smem'):
                lq = (lq + ((k if (i.w or i.kind == 'smem') else -1),))[-24:]
            while vq and vq[0] == -1: vq = vq[1:]
            while lq and lq[0] == -1: lq = lq[1:]
        for s in succs(ins, labels, k):
            if s < len(ins): dq.append((s, vq, lq))
    return list(errs.values())

def check(text, verbose=True):
    ins, labels = load(text)
    entries = [v for k, v in labels.items() if k.endswith('_kernel')] or [0]
    e = check_hazards(ins, labels) + check_waits(ins, labels, entries)
    if verbose:
        for x in e[:60]: print(x)
        print(f"asmcheck: {len(ins)} instrs, {len(e)} problems")
    return e

if __name__ == '__main__':
    check(open(sys.argv[1]).read())
```

```python
from emit import *
from layout import *
import struct, math
def f2u(x): return struct.unpack('<I', struct.pack('<f', x))[0]
sWS, sW = 4, 8
sWV = 13
sT0, sT1, sT2, sT3 = 16, 17, 18, 19
sSPIN = 40
sDBG = 56
sIDX, sVER, sSLOW, sXCC = 58, 59, 60, 61
W4 = sr(sWS, 4)
DP = "row_mask:0xf bank_mask:0xf"
ABORT = "L_abort"
SPINMAX = 1 << 20

def spin(e):
    e(f"s_add_u32 s{sSPIN}, s{sSPIN}, 1\ns_cmp_gt_u32 s{sSPIN}, {SPINMAX}\ns_cbranch_scc1 {ABORT}")

def nops(e, n):
    while n > 0:
        k = min(n, 16); e(f"s_nop {k-1}"); n -= k

def wait_flags(e, vtmp, voff, soff, imm=0, sleep=1, ge=None):
    L = e.label('wf'); Lo = e.label('wfo')
    a = f"v{voff}, {W4}, s{soff} offen" if voff is not None else f"off, {W4}, s{soff}"
    e(f"{L}:\nbuffer_load_dword v{vtmp}, {a} offset:{imm} sc1\ns_waitcnt vmcnt(0)")
    if ge is None: e(f"v_cmp_eq_u32 vcc, 0, v{vtmp}")
    else: e(f"v_cmp_gt_u32 vcc, s{ge}, v{vtmp}")
    e(f"s_cbranch_vccz {Lo}")
    spin(e)
    if sleep: e(f"s_sleep {sleep}")
    e(f"s_branch {L}\n{Lo}:")

def set_flag(e, vtmp, soff, imm=0, st='sc1'):
    e(f"v_mov_b32 v{vtmp}, 1\ns_mov_b64 exec, 1\nbuffer_store_dword v{vtmp}, off, {W4}, s{soff} offset:{imm} {st}\ns_mov_b64 exec, -1")

def publish_cu(e, vtmp, soff, imm=0, st='sc1', wave=0):
    L = e.label('pub')
    e(f"s_waitcnt vmcnt(0)\ns_barrier\ns_cmp_eq_u32 s{sWV}, {wave}\ns_cbranch_scc0 {L}")
    set_flag(e, vtmp, soff, imm, st)
    e(f"{L}:")

def srd(e, s, argoff, nbytes):
    e(f"s_load_dwordx2 {sr(s,2)}, s[0:1], {argoff}\ns_mov_b32 s{s+2}, {nbytes}\ns_mov_b32 s{s+3}, 0x20000\ns_waitcnt lgkmcnt(0)")

def load_w32(e, jobs, vL16, tmp, stage_per_wave=32768):
    vA, vR, t0 = tmp, tmp + 1, tmp + 2
    blocks = [(j, b) for j in jobs for b in range(j['nk'] // 4)]
    e(f"s_mul_i32 s{sT3}, s{sWV}, {stage_per_wave}")
    st = {'job': None, 'rj': None}
    toks = {}
    def issue(n):
        j, b = blocks[n]
        if st['job'] is not j:
            srd(e, sW, j['arg'], j['nbytes'])
            e(f"v_lshrrev_b32 v{t0}, 6, v{vL16}\nv_mul_u32_u24 v{t0}, {j['pitch']}, v{t0}\nv_and_b32 v{t0+1}, 48, v{vL16}\nv_add_u32 v{vA}, v{t0}, v{t0+1}")
            st['job'] = j
        for i in range(4):
            e(f"s_add_u32 m0, s{sT3}, {(n%8)*4096+i*1024}")
            e(f"s_add_u32 s{sT0}, s{j['sbase']}, {(64*b+16*i)*j['pitch']}")
            toks[n] = e.vm(f"buffer_load_dwordx4 v{vA}, {sr(sW,4)}, s{sT0} offen lds")
    for n in range(min(8, len(blocks))): issue(n)
    for n, (j, b) in enumerate(blocks):
        key = (j['perm'], j.get('colperm', False))
        if st['rj'] != key:
            e(f"""v_bfe_u32 v{t0}, v{vL16}, 6, 2
v_bfe_u32 v{t0+1}, v{vL16}, 9, 1
v_lshl_add_u32 v{t0}, v{t0+1}, {3 if j['perm']=='rt' else 2}, v{t0}
v_lshlrev_b32 v{t0}, 6, v{t0}
v_add_u32 v{t0}, s{sT3}, v{t0}
v_bfe_u32 v{t0+1}, v{vL16}, 8, 1""")
            if not key[1]:
                e(f"v_lshl_add_u32 v{t0}, v{t0+1}, 5, v{t0}\nv_bfe_u32 v{t0+1}, v{vL16}, 4, 2\nv_lshl_add_u32 v{vR}, v{t0+1}, 3, v{t0}")
            else:
                e(f"""v_lshl_add_u32 v{t0}, v{t0+1}, 4, v{t0}
v_bfe_u32 v{t0+1}, v{vL16}, 4, 1
v_lshl_add_u32 v{t0}, v{t0+1}, 5, v{t0}
v_bfe_u32 v{t0+1}, v{vL16}, 5, 1
v_lshl_add_u32 v{vR}, v{t0+1}, 3, v{t0}""")
            st['rj'] = key
        e.wvm(toks[n])
        for ks in range(4):
            p, base = j['dst'][4 * b + ks]
            for a in range(2):
                row = 16 * ks + (4 * a if j['perm'] == 'rt' else 8 * a)
                e(f"ds_read_b64_tr_b16 {vr(base+2*a,2,p)}, v{vR} offset:{(n%8)*4096+row*64}")
        e("s_waitcnt lgkmcnt(0)")
        if n + 8 < len(blocks): issue(n + 8)

def regs_seq(start, n):
    out = []
    for k in range(n):
        i = start + 4 * k
        out.append(('a', i) if i < 256 else ('v', 128 + i - 256))
    return out

def dma_ot(e, vL16, ssrc, lds_base, nk_per_wave=8, sld=None):
    tok = None
    for i in range(nk_per_wave):
        if i % 4 == 0:
            e(f"s_add_u32 m0, s{sld}, {lds_base+1024*i}")
            if i: e(f"s_add_u32 s{sT0}, s{ssrc}, {1024*i}")
            else: e(f"s_mov_b32 s{sT0}, s{ssrc}")
        tok = e.vm(f"buffer_load_dwordx4 v{vL16}, {W4}, s{sT0} offen offset:{1024*(i%4)} sc1 lds")
    return tok

def dma_rt(e, vXB, vt, ssrc, lds_base, sld):
    tok = None
    for i in range(8):
        if i % 4 == 0:
            e(f"s_add_u32 m0, s{sld}, {lds_base+1024*i}")
            e(f"s_add_u32 s{sT0}, s{ssrc}, {1024*i}")
        if i: e(f"v_xor_b32 v{vt}, {16*i}, v{vXB}")
        tok = e.vm(f"buffer_load_dwordx4 v{vt if i else vXB}, {W4}, s{sT0} offen offset:{1024*(i%4)} sc1 lds")
    return tok

def rt_addrs(e, vL16, vRA, t):
    e(f"""v_bfe_u32 v{t}, v{vL16}, 4, 5
v_lshlrev_b32 v{vRA}, 10, v{t}
v_and_b32 v{t}, 15, v{t}
v_bfe_u32 v{t+1}, v{vL16}, 9, 1
v_xor_b32 v{t}, v{t}, v{t+1}
v_lshl_add_u32 v{vRA}, v{t}, 4, v{vRA}""")
    for k in range(1, 8): e(f"v_xor_b32 v{vRA+k}, {32*k}, v{vRA}")

def mfma32(d, a, b, c): return f"v_mfma_f32_32x32x16_bf16 {vr(d,16)}, {a}, {b}, {vr(d,16) if c else 0}"

def gemm(e, nk, rd, tiles, buf, nbuf=3, k0=0, side=None):
    tok = {}
    def issue(kk):
        a, off = rd(kk)
        tok[kk] = e.ds(f"ds_read_b128 {vr(buf+4*(kk%nbuf),4)}, v{a} offset:{off}")
    for kk in range(k0, min(k0 + nbuf - 1, k0 + nk)): issue(kk)
    e.wds(tok[k0])
    for kk in range(k0, k0 + nk):
        x = vr(buf + 4 * (kk % nbuf), 4)
        for ti, (acc, wr, actA) in enumerate(tiles):
            wv = vr(wr[kk][1], 4, wr[kk][0])
            e(mfma32(acc, x if actA else wv, wv if actA else x, kk > 0))
            if ti == 0 and kk + nbuf - 1 < k0 + nk:
                e("s_nop 0"); issue(kk + nbuf - 1)
            if side and (kk, ti) in side: side[(kk, ti)]()
        if kk + 1 < k0 + nk: e.wds(tok[kk + 1])

def wave_sum(e, regs, t):
    n = len(regs)
    pad = lambda: nops(e, max(0, 2 - (n - 1)))
    for mod in ("quad_perm:[1,0,3,2]", "quad_perm:[2,3,0,1]", "row_half_mirror", "row_mirror"):
        pad()
        for r in regs: e(f"v_add_f32_dpp v{r}, v{r}, v{r} {mod} {DP}")
    for sw in ("v_permlane16_swap_b32", "v_permlane32_swap_b32"):
        for i, r in enumerate(regs): e(f"v_mov_b32 v{t+i}, v{r}")
        pad()
        for i, r in enumerate(regs): e(f"{sw} v{r}, v{t+i}")
        for i, r in enumerate(regs): e(f"v_add_f32 v{r}, v{r}, v{t+i}")

def unpack8(e, dst, src):
    for i in range(4):
        e(f"v_lshlrev_b32 v{dst+2*i}, 16, v{src+i}\nv_and_b32 v{dst+2*i+1}, 0xffff0000, v{src+i}")

def rne(e, r):
    e(f"v_cvt_pk_bf16_f32 v{r}, v{r}, v{r}\nv_lshlrev_b32 v{r}, 16, v{r}")

def layernorm(e, X, D, S, out):
    n = len(X); R = range(n)
    su = [S + 2 * i for i in R]; va = [S + 2 * n + 2 * i for i in R]; t = S + 4 * n
    pk = lambda op, d, a, b, m='': e(f"v_pk_{op}_f32 {vr(d,2)}, {vr(a,2)}, {vr(b,2)} {m}")
    for i in R:
        pk('add', D[i], X[i], X[i] + 2); pk('add', D[i] + 2, X[i] + 4, X[i] + 6)
    for i in R: pk('add', D[i], D[i], D[i] + 2)
    for i in R: e(f"v_add_f32 v{su[i]}, v{D[i]}, v{D[i]+1}")
    wave_sum(e, su, t)
    for i in R: e(f"v_mul_f32 v{su[i]}, {hex(f2u(-1/512))}, v{su[i]}")
    for i in R:
        for k in range(0, 8, 2): pk('add', D[i] + k, X[i] + k, su[i], "op_sel_hi:[1,0]")
    for i in R:
        pk('mul', va[i], D[i], D[i])
        for k in range(2, 8, 2): e(f"v_pk_fma_f32 {vr(va[i],2)}, {vr(D[i]+k,2)}, {vr(D[i]+k,2)}, {vr(va[i],2)}")
    for i in R: e(f"v_add_f32 v{va[i]}, v{va[i]}, v{va[i]+1}")
    wave_sum(e, va, t)
    for i in R:
        rne(e, su[i])
        e(f"v_mul_f32 v{va[i]}, {hex(f2u(1/512))}, v{va[i]}")
        rne(e, va[i])
        e(f"v_add_f32 v{va[i]}, {hex(f2u(1e-5))}, v{va[i]}")
        rne(e, va[i])
        e(f"v_sqrt_f32 v{va[i]}, v{va[i]}")
        for k in range(0, 8, 2): pk('add', D[i] + k, X[i] + k, su[i], "op_sel_hi:[1,0]")
        rne(e, va[i])
        e(f"v_rcp_f32 v{va[i]}, v{va[i]}")
        for k in range(4): e(f"v_cvt_pk_bf16_f32 v{out[i]+k}, v{D[i]+2*k}, v{D[i]+2*k+1}")
        unpack8(e, D[i], out[i])
        for k in range(0, 8, 2): pk('mul', D[i] + k, D[i] + k, va[i], "op_sel_hi:[1,0]")
        for k in range(4): e(f"v_cvt_pk_bf16_f32 v{out[i]+k}, v{D[i]+2*k}, v{D[i]+2*k+1}")
```

```python
class E:
    def __init__(self):
        self.lines = []; self.nds = 0; self.nvm = 0; self.uid = 0
    def __call__(self, s):
        for l in s.strip('\n').split('\n'):
            l = l.strip()
            if not l: continue
            op = l.split()[0]
            if op.startswith('ds_'): self.nds += 1
            elif op.startswith('buffer_') or op.startswith('global_'): self.nvm += 1
            self.lines.append(l if (l.endswith(':') or l.startswith('.') or l.startswith(';')) else '    ' + l)
    def ds(self, s):
        self(s); return self.nds
    def vm(self, s):
        self(s); return self.nvm
    def wds(self, tok):
        n = self.nds - tok
        assert 0 <= n
        self(f"s_waitcnt lgkmcnt({min(n,15)})")
    def wvm(self, tok):
        n = self.nvm - tok
        assert 0 <= n <= 63, n
        self(f"s_waitcnt vmcnt({n})")
    def label(self, base):
        self.uid += 1
        return f"L_{base}_{self.uid}"
    def text(self):
        return '\n'.join(self.lines) + '\n'

def vr(b, n=1, p='v'):
    return f"{p}{b}" if n == 1 else f"{p}[{b}:{b+n-1}]"
def sr(b, n=1): return vr(b, n, 's')
```

```python
WS_BYTES = 268435456
F_KV   = 0
F_KM   = 0x4000
F_TB   = 0x6000
F_H    = 0x8000
F_O    = 0xC000
F_P    = 0x10000
F_HB   = 0x14000
F_QB   = 0x18000
F_OB   = 0x1C000
F_X2   = 0x20000
F_END  = 0x28000
MEMR   = 0x28000
JUNK   = 0x30000
PART   = 0x40000
PA     = 0x100000
DIAGB  = 0x200000
HA     = 0x400000
XA     = 0x800000
HB     = 0xC00000
ROW_L  = 0x200000
KV     = 0x1000000
KV_L   = 0x2000000
KM     = 0x5000000
KM_L   = 0x1000000
OA_    = 0x7000000
OA_L   = 0x1000000
QB     = 0x9000000
QB_L   = 0x600000
OB     = 0xA000000
X2     = 0xA400000
A_X, A_MEM0, A_WQ, A_WK, A_WV, A_WO, A_SEG, A_BX, A_WQKV, A_WOB, A_OUT, A_DBG, A_WS = [8*i for i in range(13)]
```

```python
from common import *
cvt = lambda d, a: f"v_cvt_pk_bf16_f32 v{d}, v{a}, v{a+1}"
sPAR, sC_, sL = 12, 14, 15
sLD8, sS, sLS, sK, sB0, sB1, sKQ, sCG, sSC = 20, 21, 22, 23, 24, 25, 26, 27, 28
sX = 32
vL16, vT, vF, vF32, vST, vXA = 0, 1, 2, 3, 4, 5
def ids(e):
    e(f"""s_sub_u32 s{sT0}, s{sIDX}, 128
s_lshr_b32 s{sPAR}, s{sT0}, 5
s_and_b32 s{sC_}, s{sT0}, 15
s_lshr_b32 s{sKQ}, s{sC_}, 2
s_and_b32 s{sCG}, s{sC_}, 3
s_lshl_b32 s{sLD8}, s{sWV}, 13""")
def ls(e):
    e(f"s_lshl_b32 s{sLS}, s{sL}, 6\ns_add_u32 s{sLS}, s{sLS}, s{sS}")
def flag(e, dst, base, extra=None, sh=2):
    e(f"s_lshl_b32 s{dst}, s{sLS}, 7\ns_add_u32 s{dst}, s{dst}, {base}")
    if extra is not None: e(f"s_lshl_b32 s{sT0}, s{extra}, {sh}\ns_add_u32 s{dst}, s{dst}, s{sT0}")

WO, WB = regs_seq(0, 64), regs_seq(256, 32)
BUF, ACC, XR, U0, U1 = 8, 32, 48, 64, 80
def g1_init(e):
    ids(e)
    e(f"""s_lshl_b32 s{sB1}, s{sCG}, 8
s_lshl_b32 s{sT0}, s{sWV}, 6
s_add_u32 s{sB1}, s{sB1}, s{sT0}
s_lshl_b32 s{sB0}, s{sKQ}, 20
s_add_u32 s{sB0}, s{sB0}, s{sB1}""")
def g1_run(e, cfg):
    st = 'sc1'
    load_w32(e, [dict(arg=A_WO, nbytes=4 << 20, pitch=1024, sbase=sB0, nk=64, dst=WO, perm='ot'),
                 dict(arg=A_WOB, nbytes=512 << 10, pitch=1024, sbase=sB1, nk=32, dst=WB, perm='ot', colperm=True)], vL16, BUF)
    srd(e, sX, A_OUT, 2 << 20)
    e(f"""s_barrier
v_bfe_u32 v{vF}, v{vL16}, 4, 3
v_lshlrev_b32 v{vF}, 2, v{vF}
v_bfe_u32 v{vF32}, v{vL16}, 4, 5
v_lshlrev_b32 v{vXA}, 10, v{vF32}
v_lshlrev_b32 v{vF32}, 2, v{vF32}
v_bfe_u32 v{vT}, v{vL16}, 9, 1
v_lshl_add_u32 v{vST}, v{vT}, 15, v{vF32}
v_lshl_add_u32 v{vXA}, v{vT}, 5, v{vXA}
s_mov_b32 s{sL}, 0""")
    Ll, La, Lb, Lsk, Lo1, Lo2 = [e.label(x) for x in ('g1l', 'g1a', 'g1b', 'g1s', 'g1o', 'g1p')]
    e(f"{Ll}:\ns_mov_b32 s{sS}, s{sPAR}\n{La}:")
    ls(e)
    e(f"s_cmp_lt_u32 s{sS}, 4\ns_cbranch_scc1 {Lsk}")
    flag(e, sT2, F_HB - 4 * 128)
    wait_flags(e, vT, vF32, sT2)
    e(f"{Lsk}:")
    flag(e, sT2, F_O, sKQ, 5)
    wait_flags(e, vT, vF, sT2)
    e(f"""s_lshl_b32 s{sT1}, s{sLS}, 18
s_lshl_b32 s{sT0}, s{sKQ}, 16
s_add_u32 s{sT1}, s{sT1}, s{sT0}
s_add_u32 s{sT1}, s{sT1}, s{sLD8}
s_add_u32 s{sT1}, s{sT1}, {OA_}""")
    dma_ot(e, vL16, sT1, 0, 8, sLD8)
    e(f"s_add_u32 s{sT1}, s{sT1}, 32768")
    dma_ot(e, vL16, sT1, 32768, 8, sLD8)
    e(f"""s_bfe_u32 s{sT1}, s{sS}, 0x10001
s_lshl_b32 s{sT0}, s{sPAR}, 1
s_add_u32 s{sT1}, s{sT1}, s{sT0}
s_lshl_b32 s{sT1}, s{sT1}, 18
s_lshl_b32 s{sT0}, s{sKQ}, 11
s_add_u32 s{sT1}, s{sT1}, s{sT0}
s_lshl_b32 s{sT0}, s{sB1}, 1
s_add_u32 s{sT1}, s{sT1}, s{sT0}
s_add_u32 s{sT1}, s{sT1}, {PA}""")
    flag(e, sT2, F_P, sC_)
    rd = lambda kk: (vL16, 1024 * kk)
    e("s_waitcnt vmcnt(8)\ns_barrier")
    gemm(e, 32, rd, [(ACC, WO, True)], BUF)
    e("s_waitcnt vmcnt(0)\ns_barrier")
    gemm(e, 32, rd, [(ACC, WO, True)], BUF, k0=32)
    e("s_nop 10")
    for r in range(16):
        e(f"s_add_u32 s{sT0}, s{sT1}, {(8*(r>>2)+(r&3))*8192}")
        e(f"buffer_store_dword v{ACC+r}, v{vST}, {W4}, s{sT0} offen {st}")
    publish_cu(e, vT, sT2, st=st)
    e(f"s_add_u32 s{sS}, s{sS}, 2\ns_cmp_lt_u32 s{sS}, 64\ns_cbranch_scc1 {La}")
    e(f"s_lshl_b32 s{sS}, s{sKQ}, 1\ns_add_u32 s{sS}, s{sS}, s{sPAR}\n{Lb}:")
    ls(e)
    flag(e, sT2, F_OB)
    wait_flags(e, vT, vF32, sT2)
    e(f"s_lshl_b32 s{sT2}, s{sLS}, 15\ns_add_u32 s{sT1}, s{sT2}, s{sLD8}\ns_add_u32 s{sT1}, s{sT1}, {OB}")
    dma_ot(e, vL16, sT1, 0, 8, sLD8)
    e(f"s_add_u32 s{sT2}, s{sT2}, s{sB1}\ns_add_u32 s{sT2}, s{sT2}, {XA}")
    for u in range(2): e(f"buffer_load_dwordx4 {vr(XR+4*u,4)}, v{vXA}, {W4}, s{sT2} offen offset:{16*u} sc1")
    e("s_waitcnt vmcnt(2)\ns_barrier")
    gemm(e, 32, rd, [(ACC, WB, False)], BUF)
    e("s_waitcnt vmcnt(0)")
    unpack8(e, U0, XR); unpack8(e, U0 + 8, XR + 4)
    for i in range(8): e(cvt(XR + i, ACC + 2 * i))
    unpack8(e, U1, XR); unpack8(e, U1 + 8, XR + 4)
    for r in range(0, 16, 2): e(f"v_pk_add_f32 {vr(U0+r,2)}, {vr(U0+r,2)}, {vr(U1+r,2)}")
    for i in range(8): e(cvt(XR + i, U0 + 2 * i))
    e(f"""s_lshl_b32 s{sT1}, s{sS}, 15
s_add_u32 s{sT1}, s{sT1}, s{sB1}
s_cmp_eq_u32 s{sL}, 0
s_cbranch_scc0 {Lo1}
s_add_u32 s{sT1}, s{sT1}, {X2}""")
    for u in range(2): e(f"buffer_store_dwordx4 {vr(XR+4*u,4)}, v{vXA}, {W4}, s{sT1} offen offset:{16*u} {st}")
    flag(e, sT2, F_X2, sCG)
    publish_cu(e, vT, sT2, st=st)
    e(f"s_branch {Lo2}\n{Lo1}:")
    for u in range(2): e(f"buffer_store_dwordx4 {vr(XR+4*u,4)}, v{vXA}, {sr(sX,4)}, s{sT1} offen offset:{16*u}")
    e(f"""s_barrier
{Lo2}:
s_add_u32 s{sS}, s{sS}, 8
s_cmp_lt_u32 s{sS}, 64
s_cbranch_scc1 {Lb}
s_add_u32 s{sL}, s{sL}, 1
s_cmp_lt_u32 s{sL}, 2
s_cbranch_scc1 {Ll}""")

WG = regs_seq(0, 32)
vXB, vL8, vRA, vF16, vVS = 6, 7, 20, 28, 29
P, X, Dd, SS, OUT = 64, 96, 112, 128, 144
def rg_init(e):
    ids(e)
def rg_run(e, cfg):
    st = 'sc1'
    srd(e, sX, A_X, 2 << 20)
    rt_addrs(e, vL16, vRA, P)
    e(f"""s_and_b32 s{sT0}, s{sWV}, 1
s_lshl_b32 s{sT0}, s{sT0}, 7
v_xor_b32 v{vXB}, s{sT0}, v{vL16}
v_lshrrev_b32 v{vL8}, 1, v{vL16}
v_bfe_u32 v{vF}, v{vL16}, 4, 2
v_lshlrev_b32 v{vF}, 2, v{vF}
v_bfe_u32 v{vF16}, v{vL16}, 4, 4
v_lshlrev_b32 v{vVS}, 4, v{vF16}
v_lshlrev_b32 v{vF16}, 2, v{vF16}
v_bfe_u32 v{vF32}, v{vL16}, 4, 5
v_lshlrev_b32 v{vF32}, 2, v{vF32}
v_bfe_u32 v{vT}, v{vL16}, 9, 1
v_lshl_add_u32 v{vVS}, v{vT}, 8, v{vVS}
v_bfe_u32 v{vT}, v{vL16}, 8, 1
v_mul_u32_u24 v{vT}, 3072, v{vT}
v_add_u32 v{vVS}, v{vT}, v{vVS}
s_cmp_lt_u32 s{sC_}, 4
s_cselect_b32 s{sSC}, {hex(f2u(0.25*math.log2(math.e)))}, 1.0
s_mov_b32 s{sL}, 0""")
    Ll, La, La1, La2, Lnw, Lb, Lb1, Lb2, Lnr, Lng, Lv, Lv2 = [e.label(x) for x in
        ('rgl', 'rga', 'rga1', 'rga2', 'rgnw', 'rgb', 'rgb1', 'rgb2', 'rgnr', 'rgng', 'rgv', 'rgv2')]
    e(f"{Ll}:\ns_lshl_b32 s{sS}, s{sKQ}, 1\ns_add_u32 s{sS}, s{sS}, s{sPAR}\n{La}:")
    ls(e)
    e(f"""s_lshl_b32 s{sT1}, s{sS}, 2
s_add_u32 s{sT1}, s{sT1}, s{sCG}
s_lshl_b32 s{sT1}, s{sT1}, 2
s_add_u32 s{sT1}, s{sT1}, s{sWV}
s_lshl_b32 s{sT1}, s{sT1}, 11
s_cmp_eq_u32 s{sL}, 0
s_cbranch_scc0 {La1}""")
    for i in range(2): e(f"buffer_load_dwordx4 {vr(P+4*i,4)}, v{vL16}, {sr(sX,4)}, s{sT1} offen offset:{1024*i}")
    e(f"s_branch {La2}\n{La1}:\ns_lshl_b32 s{sT2}, s{sS}, 7\ns_add_u32 s{sT2}, s{sT2}, {F_X2}")
    wait_flags(e, vT, vF, sT2)
    e(f"s_add_u32 s{sT2}, s{sT1}, {X2}")
    for i in range(2): e(f"buffer_load_dwordx4 {vr(P+4*i,4)}, v{vL16}, {W4}, s{sT2} offen offset:{1024*i} sc1")
    e(f"""{La2}:
s_lshl_b32 s{sT0}, s{sL}, 21
s_add_u32 s{sT1}, s{sT1}, s{sT0}
s_add_u32 s{sT1}, s{sT1}, {HA}""")
    flag(e, sT2, F_H, sCG)
    e("s_waitcnt vmcnt(0)")
    unpack8(e, X, P); unpack8(e, X + 8, P + 4)
    layernorm(e, [X, X + 8], [Dd, Dd + 8], SS, [OUT, OUT + 4])
    for i in range(2): e(f"buffer_store_dwordx4 {vr(OUT+4*i,4)}, v{vL16}, {W4}, s{sT1} offen offset:{1024*i} sc1")
    publish_cu(e, vT, sT2)
    e(f"s_add_u32 s{sS}, s{sS}, 8\ns_cmp_lt_u32 s{sS}, 64\ns_cbranch_scc1 {La}")
    e(f"""s_cmp_eq_u32 s{sL}, 0
s_cbranch_scc0 {Lnw}
s_cmp_lt_u32 s{sC_}, 12
s_cbranch_scc0 {Lnw}
s_lshl_b32 s{sB0}, s{sC_}, 8
s_lshl_b32 s{sT0}, s{sWV}, 6
s_add_u32 s{sB0}, s{sB0}, s{sT0}
s_waitcnt vmcnt(0)""")
    load_w32(e, [dict(arg=A_WQKV, nbytes=1536 << 10, pitch=3072, sbase=sB0, nk=32, dst=WG, perm='rt')], vL16, BUF)
    e(f"s_barrier\n{Lnw}:\ns_mov_b32 s{sS}, s{sPAR}\n{Lb}:")
    ls(e)
    e(f"""s_cmp_lt_u32 s{sWV}, 2
s_cbranch_scc0 {Lnr}
s_lshl_b32 s{sK}, s{sC_}, 1
s_add_u32 s{sK}, s{sK}, s{sWV}
s_lshl_b32 s{sT1}, s{sS}, 5
s_add_u32 s{sT1}, s{sT1}, s{sK}
s_lshl_b32 s{sT1}, s{sT1}, 10
s_bfe_u32 s{sT3}, s{sS}, 0x10001
s_lshl_b32 s{sT0}, s{sPAR}, 1
s_add_u32 s{sT3}, s{sT3}, s{sT0}
s_lshl_b32 s{sT3}, s{sT3}, 5
s_add_u32 s{sT3}, s{sT3}, s{sK}
s_lshl_b32 s{sT3}, s{sT3}, 13
s_add_u32 s{sT3}, s{sT3}, {PA}""")
    flag(e, sT2, F_P)
    wait_flags(e, vT, vF16, sT2)
    e(f"s_cmp_eq_u32 s{sL}, 0\ns_cbranch_scc0 {Lb1}")
    for i in range(2): e(f"buffer_load_dwordx2 {vr(OUT+2*i,2)}, v{vL8}, {sr(sX,4)}, s{sT1} offen offset:{512*i}")
    e(f"s_branch {Lb2}\n{Lb1}:\ns_add_u32 s{sT2}, s{sT1}, {X2}")
    for i in range(2): e(f"buffer_load_dwordx2 {vr(OUT+2*i,2)}, v{vL8}, {W4}, s{sT2} offen offset:{512*i} sc1")
    e(f"{Lb2}:\ns_add_u32 s{sT2}, s{sT3}, 4096")
    for j in range(8): e(f"buffer_load_dwordx4 {vr(P+4*j,4)}, v{vL16}, {W4}, s{sT3 if j<4 else sT2} offen offset:{1024*(j&3)} sc1")
    e("s_waitcnt vmcnt(8)")
    unpack8(e, X, OUT)
    e(f"s_lshl_b32 s{sT0}, s{sL}, 21\ns_add_u32 s{sT1}, s{sT1}, s{sT0}\ns_add_u32 s{sT3}, s{sT1}, {XA}\ns_add_u32 s{sT1}, s{sT1}, {HB}")
    flag(e, sT2, F_HB, sK)
    e("s_waitcnt vmcnt(4)")
    for r in range(0, 8, 2): e(f"v_pk_add_f32 {vr(P+r,2)}, {vr(P+r,2)}, {vr(P+8+r,2)}")
    e("s_waitcnt vmcnt(0)")
    for r in range(0, 8, 2): e(f"v_pk_add_f32 {vr(P+16+r,2)}, {vr(P+16+r,2)}, {vr(P+24+r,2)}")
    for r in range(0, 8, 2): e(f"v_pk_add_f32 {vr(P+r,2)}, {vr(P+r,2)}, {vr(P+16+r,2)}")
    for i in range(4): e(cvt(P + 8 + i, P + 2 * i))
    unpack8(e, P, P + 8)
    for r in range(0, 8, 2): e(f"v_pk_add_f32 {vr(X+r,2)}, {vr(X+r,2)}, {vr(P+r,2)}")
    for i in range(4): e(cvt(P + 8 + i, X + 2 * i))
    unpack8(e, X, P + 8)
    for i in range(2): e(f"buffer_store_dwordx2 {vr(P+8+2*i,2)}, v{vL8}, {W4}, s{sT3} offen offset:{512*i} {st}")
    layernorm(e, [X], [Dd], SS, [OUT])
    for i in range(2): e(f"buffer_store_dwordx2 {vr(OUT+2*i,2)}, v{vL8}, {W4}, s{sT1} offen offset:{512*i} {st}")
    e("s_waitcnt vmcnt(0)")
    set_flag(e, vT, sT2, st=st)
    e(f"{Lnr}:\ns_cmp_lt_u32 s{sC_}, 12\ns_cbranch_scc0 {Lng}")
    flag(e, sT2, F_HB)
    wait_flags(e, vT, vF32, sT2)
    e(f"s_lshl_b32 s{sT1}, s{sLS}, 15\ns_add_u32 s{sT1}, s{sT1}, s{sLD8}\ns_add_u32 s{sT1}, s{sT1}, {HB}")
    dma_rt(e, vXB, vT, sT1, 0, sLD8)
    e(f"""s_lshl_b32 s{sT1}, s{sLS}, 2
s_add_u32 s{sT1}, s{sT1}, s{sCG}
s_lshl_b32 s{sT1}, s{sT1}, 2
s_add_u32 s{sT1}, s{sT1}, s{sWV}
s_mul_i32 s{sT1}, s{sT1}, 6144
s_lshl_b32 s{sT0}, s{sKQ}, 10
s_add_u32 s{sT1}, s{sT1}, s{sT0}
s_add_u32 s{sT1}, s{sT1}, {QB}""")
    flag(e, sT2, F_QB, sC_)
    rd = lambda kk: (vRA + (kk & 7), 256 * (kk >> 3))
    e(f"s_waitcnt vmcnt(0)\ns_barrier\ns_cmp_lt_u32 s{sC_}, 8\ns_cbranch_scc0 {Lv}")
    gemm(e, 32, rd, [(ACC, WG, False)], BUF)
    e(f"v_mov_b32 v{P}, s{sSC}\ns_nop 10")
    for r in range(0, 16, 2): e(f"v_pk_mul_f32 {vr(ACC+r,2)}, {vr(ACC+r,2)}, {vr(P,2)} op_sel_hi:[1,0]")
    for i in range(8): e(cvt(XR + i, ACC + 2 * i))
    for u in range(2): e(f"buffer_store_dwordx4 {vr(XR+4*u,4)}, v{vL16}, {W4}, s{sT1} offen offset:{3072*u} sc1")
    e(f"s_branch {Lv2}\n{Lv}:")
    gemm(e, 32, rd, [(ACC, WG, True)], BUF)
    e("s_nop 11")
    for i in range(8): e(cvt(XR + i, ACC + 2 * i))
    for u in range(2): e(f"buffer_store_dwordx4 {vr(XR+4*u,4)}, v{vVS}, {W4}, s{sT1} offen offset:{512*u} sc1")
    e(f"{Lv2}:")
    publish_cu(e, vT, sT2)
    e(f"""{Lng}:
s_add_u32 s{sS}, s{sS}, 2
s_cmp_lt_u32 s{sS}, 64
s_cbranch_scc1 {Lb}
s_add_u32 s{sL}, s{sL}, 1
s_cmp_lt_u32 s{sL}, 2
s_cbranch_scc1 {Ll}""")
```

```python
from common import *
sH, sREP, sL = 12, 14, 15
sLD8, sI, sN, sSX, sSM, sPX, sPM, sC = 20, 21, 22, 23, 24, 25, 26, 27
sB = 28
vL16, vXB, vRA, vKS, vVS, vKMA, vVMA, vT, vF4, vP, vP2 = 0, 1, 2, 10, 11, 12, 13, 14, 15, 16, 17
ML = 18
BUF, AK, AV, AQ, S, KP, VP, QP, SP = 20, 32, 48, 64, 80, 96, 104, 112, 120
WK, WV, WQ = regs_seq(0, 32), regs_seq(128, 32), regs_seq(256, 32)
H0, MSK, KE, SME, PEND, PSZ = 0, 32768, 36864, 45056, 49152, 26624
DEPTH = 2
cvt = lambda d, a: f"v_cvt_pk_bf16_f32 v{d}, v{a}, v{a+1}"

def init(e):
    e(f"""s_sub_u32 s{sT0}, s{sIDX}, 32
s_mul_i32 s{sH}, s{sT0}, 21846
s_lshr_b32 s{sH}, s{sH}, 16
s_mul_i32 s{sT1}, s{sH}, 3
s_sub_u32 s{sREP}, s{sT0}, s{sT1}
s_lshl_b32 s{sB}, s{sH}, 8
s_lshl_b32 s{sT0}, s{sWV}, 6
s_add_u32 s{sB}, s{sB}, s{sT0}""")
    jobs = [dict(arg=a, nbytes=4 << 20, pitch=8192, sbase=sB, nk=32, dst=d, perm='rt') for a, d in ((A_WK, WK), (A_WV, WV), (A_WQ, WQ))]
    load_w32(e, jobs, vL16, BUF)

def run(e, cfg):
    t = BUF
    e("s_barrier")
    rt_addrs(e, vL16, vRA, t)
    e(f"""s_lshl_b32 s{sLD8}, s{sWV}, 13
s_and_b32 s{sT0}, s{sWV}, 1
s_lshl_b32 s{sT0}, s{sT0}, 7
v_xor_b32 v{vXB}, s{sT0}, v{vL16}
v_bfe_u32 v{t}, v{vL16}, 9, 1
v_lshlrev_b32 v{t+1}, 8, v{t}
v_and_b32 v{t+2}, 0x70, v{vL16}
v_add_u32 v{t+2}, v{t+1}, v{t+2}
v_bfe_u32 v{t+3}, v{vL16}, 7, 1
v_lshl_add_u32 v{t+2}, v{t+3}, 10, v{t+2}
v_bfe_u32 v{t+3}, v{vL16}, 8, 1
v_lshl_add_u32 v{vKS}, v{t+3}, 7, v{t+2}
v_and_b32 v{t+2}, 0xf0, v{vL16}
v_add_u32 v{vKMA}, v{t+1}, v{t+2}
v_lshl_add_u32 v{vVS}, v{t+3}, 10, v{vKMA}
v_lshl_add_u32 v{vVMA}, v{t+3}, 3, v{vKMA}
v_bfe_u32 v{vF4}, v{vL16}, 4, 2
v_lshlrev_b32 v{vF4}, 2, v{vF4}
v_bfe_u32 v{t+2}, v{vL16}, 4, 5
v_lshlrev_b32 v{t}, 2, v{t}
v_sub_u32 v{t+2}, v{t+2}, v{t}
v_mov_b32 v{t+3}, {hex(f2u(-1e30))}
s_mov_b32 s{sC}, {hex(f2u(128**-0.5*math.log2(math.e)))}""")
    for r in range(16):
        e(f"v_cmp_gt_i32 vcc, {8*(r>>2)+(r&3)}, v{t+2}\ns_nop 1\nv_cndmask_b32 v{S+r}, 0, v{t+3}, vcc")
    for k in range(4): e(f"ds_write_b128 v{vL16}, {vr(S+4*k,4)} offset:{MSK+1024*k}")
    e(f"s_mov_b32 s{sL}, 0")
    Ll, Li, Lnx, Lnm, Lnp = [e.label(x) for x in ('r1l', 'r1i', 'r1nx', 'r1nm', 'r1np')]
    def fetch_h(sseg):
        e(f"""s_lshl_b32 s{sT1}, s{sL}, 6
s_add_u32 s{sT1}, s{sT1}, s{sseg}
s_lshl_b32 s{sT2}, s{sT1}, 7
s_add_u32 s{sT2}, s{sT2}, {F_H}""")
        wait_flags(e, vT, vF4, sT2)
        e(f"s_lshl_b32 s{sT1}, s{sT1}, 15\ns_add_u32 s{sT1}, s{sT1}, s{sLD8}\ns_add_u32 s{sT1}, s{sT1}, {HA}")
        dma_rt(e, vXB, vT, sT1, H0, sLD8)
    e(f"""{Ll}:
s_mov_b32 s{sI}, 0
s_cmp_eq_u32 s{sREP}, 0
s_cselect_b32 s{sN}, 22, 21
s_mov_b32 s{sSX}, s{sREP}
s_mov_b32 s{sSM}, s{sREP}
s_mov_b32 s{sPX}, {PEND}
s_mov_b32 s{sPM}, {PEND}""")
    fetch_h(sSX)
    e(f"{Li}:\ns_cmp_lt_u32 s{sI}, s{sN}\ns_cbranch_scc0 {Lnx}")
    e(f"""s_lshl_b32 s{sT1}, s{sL}, 6
s_add_u32 s{sT1}, s{sT1}, s{sSX}
s_lshl_b32 s{sT1}, s{sT1}, 5
s_add_u32 s{sT1}, s{sT1}, s{sH}
s_lshl_b32 s{sT1}, s{sT1}, 2
s_add_u32 s{sT1}, s{sT1}, s{sWV}
s_lshl_b32 s{sT1}, s{sT1}, 12
s_add_u32 s{sT1}, s{sT1}, {KV}
s_lshl_b32 s{sT2}, s{sWV}, 11
v_add_u32 v{vP2}, s{sT2}, v{vL16}
v_add_u32 v{vP}, s{sPX}, v{vL16}
s_waitcnt vmcnt(0) lgkmcnt(0)
s_barrier""")
    rd = lambda kk: (vRA + (kk & 7), H0 + 256 * (kk >> 3))
    gemm(e, 32, rd, [(AK, WK, False), (AV, WV, True)], BUF)
    side = {}
    def S_(kk, lines): side[(kk, 0)] = lambda: [e(x) for x in lines]
    S_(0, ["s_nop 3"]); S_(1, ["s_nop 3"])
    S_(2, [cvt(KP + i, AK + 2 * i) for i in range(4)])
    S_(3, [cvt(KP + i, AK + 2 * i) for i in range(4, 8)])
    S_(4, [cvt(VP + i, AV + 2 * i) for i in range(4)])
    S_(5, [cvt(VP + i, AV + 2 * i) for i in range(4, 8)])
    for u in range(2):
        S_(6 + 2 * u, [f"buffer_store_dwordx4 {vr(KP+4*u,4)}, v{vKS}, {W4}, s{sT1} offen offset:{512*u} sc1"])
        S_(10 + 2 * u, [f"buffer_store_dwordx4 {vr(VP+4*u,4)}, v{vVS}, {W4}, s{sT1} offen offset:{2048+512*u} sc1"])
        S_(14 + 2 * u, [f"ds_write_b128 v{vP2}, {vr(KP+4*u,4)} offset:{KE+1024*u}"])
    for k in range(4): S_(18 + 2 * k, [f"ds_read_b128 {vr(S+4*k,4)}, v{vL16} offset:{MSK+1024*k}"])
    gemm(e, 32, rd, [(AQ, WQ, False)], BUF, side=side)
    e(f"""s_lshl_b32 s{sT2}, s{sL}, 5
s_add_u32 s{sT2}, s{sT2}, s{sH}
s_lshl_b32 s{sT2}, s{sT2}, 6
s_add_u32 s{sT2}, s{sT2}, s{sSX}
s_lshl_b32 s{sT2}, s{sT2}, 2
s_add_u32 s{sT2}, s{sT2}, {F_KV}
v_add_u32 v{vP2}, s{sPX}, v{vP2}
s_nop 4""")
    for i in range(8): e(cvt(QP + i, AQ + 2 * i))
    for u in range(2): e(f"ds_write_b128 v{vP2}, {vr(QP+4*u,4)} offset:{1024*u}")
    e("s_waitcnt lgkmcnt(0)")
    publish_cu(e, vT, sT2)
    KO = [AK + 4 * k for k in range(8)]
    QO = [AQ, AQ + 4, AQ + 8, AQ + 12, KP, KP + 4, QP, QP + 4]
    tk = {}
    def rdS(k):
        e(f"ds_read_b128 {vr(KO[k],4)}, v{vL16} offset:{KE+1024*k}")
        tk[k] = e.ds(f"ds_read_b128 {vr(QO[k],4)}, v{vP} offset:{1024*k}")
    for k in range(3): rdS(k)
    for k in range(8):
        e.wds(tk[k])
        e(mfma32(S, vr(KO[k], 4), vr(QO[k], 4), True))
        if k + 3 < 8: e("s_nop 0"); rdS(k + 3)
    e(f"s_add_u32 s{sSX}, s{sSX}, 3\ns_cmp_lt_u32 s{sSX}, 64\ns_cbranch_scc0 {Lnp}")
    fetch_h(sSX)
    e(f"{Lnp}:\ns_nop 9")
    m, l = ML, ML + 1
    e(f"v_max3_f32 v{m}, v{S}, v{S+1}, v{S+2}")
    for r in range(3, 15, 2): e(f"v_max3_f32 v{m}, v{m}, v{S+r}, v{S+r+1}")
    e(f"""v_max_f32 v{m}, v{m}, v{S+15}
v_mov_b32 v{l}, v{m}
s_nop 1
v_permlane32_swap_b32 v{m}, v{l}
v_max_f32 v{m}, v{m}, v{l}
v_mul_f32 v{m}, s{sC}, v{m}""")
    for r in range(16): e(f"v_fma_f32 v{S+r}, v{S+r}, s{sC}, -v{m}")
    for r in range(16): e(f"v_exp_f32 v{S+r}, v{S+r}")
    for i in range(8): e(cvt(KP + i, S + 2 * i))
    e(f"s_lshl_b32 s{sT2}, s{sWV}, 12\nv_add_u32 v{vP2}, s{sT2}, v{vP}")
    e(mfma32(AQ, vr(VP, 4), vr(KP, 4), False))
    e(mfma32(AQ, vr(VP + 4, 4), vr(KP + 4, 4), True))
    for r in range(8): e(f"v_add_f32 v{S+r}, v{S+r}, v{S+8+r}")
    for r in range(4): e(f"v_add_f32 v{S+r}, v{S+r}, v{S+4+r}")
    e(f"""v_add_f32 v{S}, v{S}, v{S+2}
v_add_f32 v{S+1}, v{S+1}, v{S+3}
v_add_f32 v{l}, v{S}, v{S+1}
s_lshl_b32 s{sT2}, s{sWV}, 9
s_add_u32 s{sT2}, s{sT2}, s{sPX}
v_lshrrev_b32 v{vT}, 1, v{vL16}
v_add_u32 v{vT}, s{sT2}, v{vT}""")
    for k in range(4): e(f"ds_write_b128 v{vP2}, {vr(AQ+4*k,4)} offset:{8192+1024*k}")
    e(f"""ds_write_b64 v{vT}, {vr(ML,2)} offset:24576
s_add_u32 s{sPX}, s{sPX}, {PSZ}
s_cmp_eq_u32 s{sPX}, {PEND+3*PSZ}
s_cselect_b32 s{sPX}, {PEND}, s{sPX}
{Lnx}:
s_cmp_ge_u32 s{sI}, {DEPTH}
s_cbranch_scc0 {Lnm}""")
    KMO, VMO, QM, O, PB, T = KP, SP, QP, AQ, VP, AK
    e(f"""s_lshl_b32 s{sT2}, s{sWV}, 11
s_add_u32 s{sT2}, s{sT2}, s{sPM}
v_add_u32 v{vP}, s{sT2}, v{vL16}
s_lshl_b32 s{sT2}, s{sWV}, 12
s_add_u32 s{sT2}, s{sT2}, s{sPM}
v_add_u32 v{vP2}, s{sT2}, v{vL16}
s_lshl_b32 s{sT2}, s{sWV}, 9
s_add_u32 s{sT2}, s{sT2}, s{sPM}
v_lshrrev_b32 v{vT}, 1, v{vL16}
v_add_u32 v{vT}, s{sT2}, v{vT}""")
    for u in range(2): e(f"ds_read_b128 {vr(QM+4*u,4)}, v{vP} offset:{1024*u}")
    for k in range(4): e(f"ds_read_b128 {vr(O+4*k,4)}, v{vP2} offset:{8192+1024*k}")
    e(f"""ds_read_b64 {vr(ML,2)}, v{vT} offset:24576
s_lshl_b32 s{sT2}, s{sL}, 5
s_add_u32 s{sT2}, s{sT2}, s{sH}
s_lshl_b32 s{sT2}, s{sT2}, 7
s_add_u32 s{sT2}, s{sT2}, {F_KM}
s_add_u32 s{sT3}, s{sSM}, 1
s_lshl_b32 s{sT1}, s{sL}, 6
s_add_u32 s{sT1}, s{sT1}, s{sSM}
s_lshl_b32 s{sT1}, s{sT1}, 5
s_add_u32 s{sT1}, s{sT1}, s{sH}
s_lshl_b32 s{sT0}, s{sWV}, 10
v_add_u32 v{vP}, s{sT0}, v{vL16}
s_waitcnt lgkmcnt(0)""")
    wait_flags(e, vT, None, sT2, ge=sT3)
    e(f"""s_lshl_b32 s{sT2}, s{sT1}, 2
s_add_u32 s{sT2}, s{sT2}, s{sWV}
s_lshl_b32 s{sT2}, s{sT2}, 11
s_add_u32 s{sT3}, s{sT2}, {KM}""")
    for u in range(2): e(f"buffer_load_dwordx4 {vr(KMO+4*u,4)}, v{vKMA}, {W4}, s{sT3} offen offset:{512*u} sc1")
    for u in range(2): e(f"buffer_load_dwordx2 {vr(VMO+2*u,2)}, v{vVMA}, {W4}, s{sT3} offen offset:{1024+512*u} sc1")
    e(f"""s_add_u32 s{sT2}, s{sT2}, {OA_}
s_lshl_b32 s{sT1}, s{sT1}, 2
s_add_u32 s{sT1}, s{sT1}, {F_O}
s_waitcnt vmcnt(3)""")
    e(mfma32(S, vr(KMO, 4), vr(QM, 4), False))
    e("s_waitcnt vmcnt(2)")
    e(mfma32(S, vr(KMO + 4, 4), vr(QM + 4, 4), True))
    e(f"""s_nop 11
v_pk_add_f32 {vr(S,2)}, {vr(S,2)}, {vr(S+2,2)}
v_pk_add_f32 {vr(S+2,2)}, {vr(S+4,2)}, {vr(S+6,2)}
ds_write_b128 v{vP}, {vr(S,4)} offset:{SME}
s_waitcnt lgkmcnt(0)
s_barrier""")
    for k in range(4): e(f"ds_read_b128 {vr(S+4*k,4)}, v{vL16} offset:{SME+1024*k}")
    pk = lambda op, d, a, b, mm='': e(f"v_pk_{op}_f32 {vr(d,2)}, {vr(a,2)}, {vr(b,2)} {mm}")
    e("s_waitcnt lgkmcnt(2)")
    pk('add', S, S, S + 4); pk('add', S + 2, S + 2, S + 6)
    e("s_waitcnt lgkmcnt(0)")
    pk('add', S + 8, S + 8, S + 12); pk('add', S + 10, S + 10, S + 14)
    pk('add', S, S, S + 8); pk('add', S + 2, S + 2, S + 10)
    e(f"""v_max3_f32 v{T}, v{S}, v{S+1}, v{S+2}
v_max_f32 v{T}, v{T}, v{S+3}
v_mov_b32 v{T+1}, v{T}
s_nop 1
v_permlane32_swap_b32 v{T}, v{T+1}
v_max_f32 v{T}, v{T}, v{T+1}
v_mul_f32 v{T}, s{sC}, v{T}
v_max_f32 v{T}, v{T}, v{m}
v_sub_f32 v{T+2}, v{m}, v{T}""")
    for r in range(4): e(f"v_fma_f32 v{S+r}, v{S+r}, s{sC}, -v{T}")
    e(f"v_exp_f32 v{T+2}, v{T+2}")
    for r in range(4): e(f"v_exp_f32 v{S+r}, v{S+r}")
    e(f"""v_fma_f32 v{l}, v{l}, v{T+2}, v{S}
v_add_f32 v{l}, v{l}, v{S+1}
v_add_f32 v{T}, v{S+2}, v{S+3}
v_add_f32 v{l}, v{l}, v{T}
v_mov_b32 v{T}, v{l}
s_nop 1
v_permlane32_swap_b32 v{l}, v{T}
v_add_f32 v{l}, v{l}, v{T}
v_rcp_f32 v{T}, v{l}
s_nop 0
v_mul_f32 v{T+2}, v{T+2}, v{T}""")
    pk('mul', S, S, T, "op_sel_hi:[1,0]"); pk('mul', S + 2, S + 2, T, "op_sel_hi:[1,0]")
    for x in (cvt(PB, S), cvt(PB + 1, S), cvt(PB + 2, S + 2), cvt(PB + 3, S + 2)): e(x)
    for r in range(0, 16, 2): pk('mul', O + r, O + r, T + 2, "op_sel_hi:[1,0]")
    e("s_waitcnt vmcnt(0)\ns_nop 0")
    e(mfma32(O, vr(VMO, 4), vr(PB, 4), True))
    e(f"""s_add_u32 s{sSM}, s{sSM}, 3
s_add_u32 s{sPM}, s{sPM}, {PSZ}
s_cmp_eq_u32 s{sPM}, {PEND+3*PSZ}
s_cselect_b32 s{sPM}, {PEND}, s{sPM}
s_nop 7""")
    for i in range(8): e(cvt(QM + i, O + 2 * i))
    for u in range(2): e(f"buffer_store_dwordx4 {vr(QM+4*u,4)}, v{vL16}, {W4}, s{sT2} offen offset:{1024*u} sc1")
    publish_cu(e, vT, sT1)
    e(f"""{Lnm}:
s_add_u32 s{sI}, s{sI}, 1
s_add_u32 s{sT0}, s{sN}, {DEPTH}
s_cmp_lt_u32 s{sI}, s{sT0}
s_cbranch_scc1 {Li}
s_add_u32 s{sL}, s{sL}, 1
s_cmp_lt_u32 s{sL}, 2
s_cbranch_scc1 {Ll}""")
```

```python
from common import *
cvt = lambda d, a: f"v_cvt_pk_bf16_f32 v{d}, v{a}, v{a+1}"
sHB, sPAR, sL = 12, 14, 15
sS, sLS, sNB, sN, sJ, sJE, sTH, sOB, sFB, sRET = 20, 21, 22, 23, 24, 25, 26, 27, 28, 29
sVM = 30
vL16, vT, vF, vVR, vKA, vVA, vMW, vMR, vFL = range(9)
S = [16, 32]; P = 48; KO = 56; VA, VB = 60, 64; QN = 68; NA = 72; MG = 88
ACC = lambda j: 128 + 16 * j
QS = lambda j: vr(4 * j, 4, 'a')
LV, LM = 65536, 131072
ex = lambda r: f"v_exp_f32 v{r}, v{r}"

def init(e):
    e(f"""s_sub_u32 s{sT0}, s{sIDX}, 192
s_lshr_b32 s{sHB}, s{sT0}, 1
s_and_b32 s{sPAR}, s{sT0}, 1""")

def tile(e, t, nxt, prev, acc, mid=None, wait=None):
    s = S[t & 1]
    if nxt: e(nxt)
    for r in range(4): e(ex(s + r))
    if prev: e(prev)
    if mid: mid()
    for r in range(4, 8): e(ex(s + r))
    for i in range(4): e(cvt(P + i, s + 2 * i))
    for r in range(8, 14): e(ex(s + r))
    if wait: e(wait)
    e(mfma32(acc, vr(VA, 4), vr(P, 4), True))
    for r in range(14, 16): e(ex(s + r))
    for i in range(4, 8): e(cvt(P + i, s + 2 * i))
pvb = lambda acc: mfma32(acc, vr(VB, 4), vr(P + 4, 4), True)
def vread(e, a, off):
    e(f"s_mov_b64 exec, {sr(sVM,2)}\nds_read_b128 {vr(VA,4)}, v{a} offset:{off}\nds_read_b128 {vr(VB,4)}, v{a} offset:{off+512}\ns_mov_b64 exec, -1")

def ladder(e, sreg, rng, body, name):
    Ls = {j: e.label(f"{name}{j}") for j in rng}; Le = e.label(name + 'e')
    rng = list(rng)
    for j in rng[1:]: e(f"s_cmp_eq_u32 s{sreg}, {j}\ns_cbranch_scc1 {Ls[j]}")
    for j in rng:
        e(f"{Ls[j]}:"); body(j)
        if j != rng[-1]: e(f"s_branch {Le}")
    e(f"{Le}:")

def run(e, cfg):
    e(f"""v_bfe_u32 v{vF}, v{vL16}, 4, 2
v_min_u32 v{vF}, 2, v{vF}
v_lshlrev_b32 v{vF}, 4, v{vF}
v_bfe_u32 v{vT}, v{vL16}, 9, 1
v_and_b32 v{vVR}, 0xf0, v{vL16}
v_lshl_add_u32 v{vVR}, v{vT}, 8, v{vVR}
v_add_u32 v{vVR}, {LV}, v{vVR}
v_add_u32 v{vMR}, {LM}, v{vL16}
s_mul_i32 s{sT0}, s{sWV}, 3072
v_add_u32 v{vMW}, s{sT0}, v{vMR}
v_lshlrev_b32 v{vFL}, 6, v{vL16}
s_mov_b32 s{sVM}, 0xffff
s_mov_b32 s{sVM+1}, 0xffff
s_mov_b32 s{sTH}, {hex(f2u(2.0**cfg.get('thrb',60)))}
s_mov_b32 s{sL}, 0""")
    for r in range(8): e(f"v_mov_b32 v{VA+r}, 0x3f803f80")
    Ll, Ls, Lnq, Lw1, Lw2, Lnf, Ln2, Lz, Llo, Lx0, Lx1, Lm, Lno, Lslow, Lf0, Lf1 = [e.label(x) for x in
        ('bl', 'bs', 'bnq', 'bw1', 'bw2', 'bnf', 'bn2', 'bz', 'blo', 'bx0', 'bx1', 'bm', 'bno', 'bslow', 'bf0', 'bf1')]
    e(f"""{Ll}:
s_mov_b32 s{sS}, 0
s_mov_b32 s{sNB}, 0
s_lshl_b32 s{sT0}, s{sL}, 6
s_lshl_b32 s{sT1}, s{sWV}, 1
s_add_u32 s{sT0}, s{sT0}, s{sT1}
s_add_u32 s{sT0}, s{sT0}, s{sPAR}
s_lshl_b32 s{sT0}, s{sT0}, 5
s_add_u32 s{sT0}, s{sT0}, s{sHB}
s_lshl_b32 s{sOB}, s{sT0}, 10
s_add_u32 s{sOB}, s{sOB}, {OB}
s_lshl_b32 s{sFB}, s{sT0}, 2
s_add_u32 s{sFB}, s{sFB}, {F_OB}
{Ls}:
s_lshl_b32 s{sLS}, s{sL}, 6
s_add_u32 s{sLS}, s{sLS}, s{sS}
s_lshl_b32 s{sT2}, s{sLS}, 7
s_lshr_b32 s{sT0}, s{sHB}, 3
s_lshl_b32 s{sT0}, s{sT0}, 2
s_add_u32 s{sT2}, s{sT2}, s{sT0}
s_add_u32 s{sT2}, s{sT2}, {F_QB}
s_lshl_b32 s{sT1}, s{sLS}, 5
s_add_u32 s{sT1}, s{sT1}, s{sHB}
s_mul_i32 s{sT1}, s{sT1}, 3072
s_add_u32 s{sT1}, s{sT1}, {QB}
s_lshl_b32 s{sT3}, s{sS}, 10
v_add_u32 v{vKA}, s{sT3}, v{vL16}
v_add_u32 v{vVA}, s{sT3}, v{vVR}""")
    wait_flags(e, vT, vF, sT2)
    e(f"""s_cmp_lt_u32 s{sWV}, 2
s_cbranch_scc0 {Lw1}
s_lshl_b32 s{sT0}, s{sWV}, 16
s_add_u32 m0, s{sT3}, s{sT0}
s_lshl_b32 s{sT0}, s{sWV}, 10
s_add_u32 s{sT0}, s{sT0}, s{sT1}
s_add_u32 s{sT0}, s{sT0}, 1024
buffer_load_dwordx4 v{vL16}, {W4}, s{sT0} offen sc1 lds
{Lw1}:
buffer_load_dwordx4 {vr(QN,4)}, v{vL16}, {W4}, s{sT1} offen sc1
s_waitcnt vmcnt(0)
s_barrier
ds_read_b128 {vr(KO,4)}, v{vKA}""")
    vread(e, vVA, 0)
    e("s_waitcnt lgkmcnt(0)")
    def chain(n):
        if n == 0: return
        qk = lambda t: mfma32(S[t & 1], vr(KO, 4), QS(t), False)
        e(qk(0)); e("s_nop 10" if n > 1 else "s_nop 11")
        for t in range(n):
            tile(e, t, qk(t + 1) if t + 1 < n else None, pvb(ACC(t - 1)) if t else None, ACC(t))
        e("s_nop 1"); e(pvb(ACC(n - 1)))
    ladder(e, sNB, range(9), chain, 'ch')
    def fin(js, Lre, ret):
        e("s_nop 11")
        for k, j in enumerate(js): e(f"v_rcp_f32 v{MG+2*k}, v{ACC(j)+8}")
        e(f"s_nop 0\nv_max_f32 v{vT}, v{MG}, v{ACC(js[0])+8}")
        for k, j in enumerate(js[1:], 1): e(f"v_max3_f32 v{vT}, v{vT}, v{MG+2*k}, v{ACC(j)+8}")
        e(f"v_mov_b32 v{MG+1}, v{ACC(js[0])+8}")
        for j in js[1:]: e(f"v_add_f32 v{MG+1}, v{MG+1}, v{ACC(j)+8}")
        e(f"""v_cmp_ngt_f32 vcc, s{sTH}, v{vT}
v_cmp_u_f32 {sr(sT0,2)}, v{MG+1}, v{MG+1}
s_mov_b32 s{sJ}, {js[0]}
s_mov_b32 s{sJE}, {js[-1]+1}
s_mov_b32 s{sRET}, {ret}
s_or_b64 vcc, vcc, {sr(sT0,2)}
s_cbranch_scc1 {Lslow}
{Lre}:""")
        for k, j in enumerate(js): e(f"v_rcp_f32 v{MG+2*k}, v{ACC(j)+8}")
        e("s_nop 0")
        for k, j in enumerate(js):
            a = ACC(j)
            for r in range(0, 8, 2): e(f"v_pk_mul_f32 {vr(a+r,2)}, {vr(a+r,2)}, {vr(MG+2*k,2)} op_sel_hi:[1,0]")
            for i in range(4): e(cvt(a + i, a + 2 * i))
            e(f"s_add_u32 s{sT0}, s{sOB}, {j*8*32768}")
            e(f"buffer_store_dwordx4 {vr(a,4)}, v{vL16}, {W4}, s{sT0} offen sc1")
        mask = sum(1 << j for j in js)
        e(f"""v_mov_b32 v{vT}, 1
s_waitcnt vmcnt(0)
s_mov_b64 exec, {mask}
buffer_store_dword v{vT}, v{vFL}, {W4}, s{sFB} offen sc1
s_mov_b64 exec, -1""")
    e(f"s_cmp_eq_u32 s{sS}, 63\ns_cbranch_scc0 {Lnf}")
    fin(list(range(7)), Lf0, 0)
    e(f"""{Lnf}:
s_and_b32 s{sT0}, s{sS}, 1
s_cmp_eq_u32 s{sT0}, s{sPAR}
s_cbranch_scc0 {Ln2}""")
    e(f"""s_lshl_b32 s{sT0}, s{sWV}, 10
v_add_u32 v{vKA}, s{sT0}, v{vL16}
v_add_u32 v{vVA}, s{sT0}, v{vVR}
ds_read_b128 {vr(KO,4)}, v{vKA}""")
    for r in range(0, 16, 2): e(f"v_mov_b64 {vr(NA+r,2)}, 0")
    e(f"""v_mov_b64 {vr(P+4,2)}, 0
v_mov_b64 {vr(P+6,2)}, 0
s_add_u32 s{sN}, s{sS}, 4
s_sub_u32 s{sN}, s{sN}, s{sWV}
s_lshr_b32 s{sN}, s{sN}, 2
s_waitcnt lgkmcnt(0)
s_cbranch_scc0 {Lm}""")
    qn = lambda t: mfma32(S[t & 1], vr(KO, 4), vr(QN, 4), False)
    e(qn(0))
    e(f"s_nop 0\nds_read_b128 {vr(KO,4)}, v{vKA} offset:4096\ns_nop 7\ns_waitcnt lgkmcnt(0)\n{Llo}:")
    for t in range(2):
        def mid():
            vread(e, vVA, 4096 * t)
            e(f"ds_read_b128 {vr(KO,4)}, v{vKA} offset:{4096*(t+2)}")
            if t == 1: e(f"v_add_u32 v{vKA}, 0x2000, v{vKA}\nv_add_u32 v{vVA}, 0x2000, v{vVA}")
        tile(e, t, qn(t + 1) + f"\ns_sub_u32 s{sN}, s{sN}, 1", pvb(NA), NA, mid, "s_waitcnt lgkmcnt(0)")
        e(f"s_cmp_eq_u32 s{sN}, 0")
        e(f"s_cbranch_scc1 {Lx0}" if t == 0 else f"s_cbranch_scc0 {Llo}")
    e(f"{Lx0}:")
    e(pvb(NA)); e("s_nop 11")
    e(f"{Lm}:")
    for k in range(3): e(f"ds_write_b128 v{vMW}, {vr(NA+4*k,4)} offset:{1024*k}")
    e(f"""s_bfe_u32 s{sT0}, s{sS}, 0x20001
s_cmp_eq_u32 s{sT0}, s{sWV}
s_waitcnt lgkmcnt(0)
s_barrier
s_cbranch_scc0 {Ln2}""")
    dst = [NA, MG, MG + 12, MG + 24]
    for ww in range(4):
        for k in range(3): e(f"ds_read_b128 {vr(dst[ww]+4*k,4)}, v{vMR} offset:{3072*ww+1024*k}")
    e("s_waitcnt lgkmcnt(6)")
    for r in range(0, 10, 2): e(f"v_pk_add_f32 {vr(NA+r,2)}, {vr(NA+r,2)}, {vr(MG+r,2)}")
    e("s_waitcnt lgkmcnt(0)")
    for r in range(0, 10, 2): e(f"v_pk_add_f32 {vr(MG+12+r,2)}, {vr(MG+12+r,2)}, {vr(MG+24+r,2)}")
    def put(j):
        for r in range(0, 10, 2): e(f"v_pk_add_f32 {vr(ACC(j)+r,2)}, {vr(NA+r,2)}, {vr(MG+12+r,2)}")
        for r in range(4): e(f"v_accvgpr_write_b32 a{4*j+r}, v{QN+r}")
    ladder(e, sNB, range(8), put, 'put')
    e(f"""s_add_u32 s{sNB}, s{sNB}, 1
{Ln2}:
s_add_u32 s{sS}, s{sS}, 1
s_cmp_lt_u32 s{sS}, 64
s_cbranch_scc1 {Ls}""")
    fin([7], Lf1, 1)
    Lend = e.label('bend')
    e(f"""s_barrier
s_add_u32 s{sL}, s{sL}, 1
s_cmp_lt_u32 s{sL}, 2
s_cbranch_scc1 {Ll}
s_branch {Lend}""")
    QT, CM = MG, S[1]
    Lp1, Lp2 = e.label('sp1'), e.label('sp2')
    e(f"{Lslow}:")
    def get(j):
        for r in range(4): e(f"v_accvgpr_read_b32 v{QT+r}, a{4*j+r}")
    ladder(e, sJ, range(8), get, 'get')
    e(f"""v_mov_b32 v{vKA}, v{vL16}
v_mov_b32 v{vT}, 0xff800000
s_mov_b32 s{sN}, 64
{Lp1}:
ds_read_b128 {vr(KO,4)}, v{vKA}
v_add_u32 v{vKA}, 0x400, v{vKA}
s_waitcnt lgkmcnt(0)
{mfma32(S[0], vr(KO,4), vr(QT,4), False)}
s_nop 11""")
    for r in range(0, 16, 2): e(f"v_max3_f32 v{vT}, v{vT}, v{S[0]+r}, v{S[0]+r+1}")
    e(f"""s_sub_u32 s{sN}, s{sN}, 1
s_cmp_lg_u32 s{sN}, 0
s_cbranch_scc1 {Lp1}
v_mov_b32 v{CM}, v{vT}
s_nop 1
v_permlane32_swap_b32 v{vT}, v{CM}
v_max_f32 v{vT}, v{vT}, v{CM}""")
    for r in range(16): e(f"v_sub_f32 v{CM+r}, 0, v{vT}")
    for r in range(0, 16, 2): e(f"v_mov_b64 {vr(NA+r,2)}, 0")
    e(f"""v_mov_b32 v{vKA}, v{vL16}
v_mov_b32 v{vVA}, v{vVR}
s_mov_b32 s{sN}, 64
{Lp2}:
ds_read_b128 {vr(KO,4)}, v{vKA}""")
    vread(e, vVA, 0)
    e(f"""v_add_u32 v{vKA}, 0x400, v{vKA}
v_add_u32 v{vVA}, 0x400, v{vVA}
s_waitcnt lgkmcnt(0)
v_mfma_f32_32x32x16_bf16 {vr(S[0],16)}, {vr(KO,4)}, {vr(QT,4)}, {vr(CM,16)}
s_nop 11""")
    for r in range(16): e(ex(S[0] + r))
    for i in range(8): e(cvt(P + i, S[0] + 2 * i))
    e(f"""s_nop 1
{mfma32(NA, vr(VA,4), vr(P,4), True)}
{pvb(NA)}
s_sub_u32 s{sN}, s{sN}, 1
s_cmp_lg_u32 s{sN}, 0
s_cbranch_scc1 {Lp2}
s_nop 11""")
    def put2(j):
        for r in range(0, 10, 2): e(f"v_mov_b64 {vr(ACC(j)+r,2)}, {vr(NA+r,2)}")
    ladder(e, sJ, range(8), put2, 'pu2')
    e(f"""s_add_u32 s{sJ}, s{sJ}, 1
s_cmp_lt_u32 s{sJ}, s{sJE}
s_cbranch_scc1 {Lslow}
s_cmp_eq_u32 s{sRET}, 0
s_cbranch_scc1 {Lf0}
s_branch {Lf1}
{Lend}:""")
```

```python
from emit import *
from layout import *
import math, struct
def f2u(x): return struct.unpack('<I', struct.pack('<f', x))[0]

sWS = 4
sW = 8
sH, sWV, sSTEP, sLAYER = 12, 13, 14, 15
sT0, sT1, sT2, sT3 = 16, 17, 18, 19
sP = 20
sTAG, sTADD = 22, 23
sG = 24
sMC, sMN, sMR = 26, 27, 28
sMGO, sMSO = 29, 30
sKVN, sKVC, sKM, sVMP, sFKV, sFKM = 31, 32, 33, 34, 35, 36
sMO = 37
sSPIN, sCQ, sTH, sJL, sKVMAX, sFKVMAX = 40, 41, 42, 43, 44, 45
sMASK = 46
sTM = 50
sDBG = 56

vL16, vLW, vQW, vKW, vQR, vXR, vIDO, vOW, vSR, vPST, vIDX, vMST = range(0, 12)
vONE = 12
M = 16
L = 48
AQ, AK, AV, KX, VX, QE = 80, 88, 96, 104, 112, 120
SH = 131072
TP = 40
X_M = 0
X_SX = 8192
X_SM = X_SX + 4096
X_E = X_SM + 2048
X_O = X_E + 512
X_SEL = X_O + 2560
X_J = X_SEL + 1024
X_T = X_J + 1024
TQ, TK, TW = 0, 1408, 2688
assert X_T + 4*TW <= 32768
DP = "row_mask:0xf bank_mask:0xf"
TAGB = 0.0028

STREAM = {'q': (0, 1, 6, 7), 'k': (6, 7), 'v': (), 'o': (6, 7)}

def wreg_map():
    m = {}; n = 0; sl = 0
    for mat in 'qkvo':
        k = 0
        for b in range(8):
            for t in range(2):
                if b in STREAM[mat]:
                    m[(mat, b, t)] = ('L', k % 4, sl * 2048); k += 1; sl += 1
                else:
                    m[(mat, b, t)] = ('a', 8 * n) if n < 32 else ('v', 128 + 8 * (n - 32)); n += 1
    return m
WM = wreg_map()
DIAG = [False]
def wop(mat, b, t):
    x = WM[(mat, b, t)]
    if x[0] == 'L': return vr(L + 8 * x[1], 8)
    if DIAG[0] and x[0] == 'v' and x[1] >= 240: return vr(232, 8)
    return vr(x[1], 8, x[0])
def lread(e, mat, b, t, half):
    x = WM[(mat, b, t)]
    return e.ds(f"ds_read_b128 {vr(L+8*x[1]+4*half,4)}, v{vLW} offset:{x[2]+1024*half}")
def streamed(mat): return [((mat, b, t), hf) for b in STREAM[mat] for t in range(2) for hf in range(2)]

def setup(e, cfg):
    ESTR = cfg['estr']
    e(f"""
v_lshrrev_b32 v21, 4, v{vL16}
v_and_b32 v22, 15, v21
v_lshrrev_b32 v23, 4, v21
s_lshl_b32 s{sT0}, s{sWV}, 15
v_add_u32 v{vLW}, s{sT0}, v{vL16}
s_mul_i32 s{sT0}, s{sWV}, {TW}
s_add_u32 s{sT0}, s{sT0}, {SH+X_T}
v_mul_u32_u24 v24, {TP}, v22
v_add_u32 v24, s{sT0}, v24
v_lshl_add_u32 v{vQW}, v23, 2, v24
v_lshl_add_u32 v{vKW}, v23, 3, v24
v_lshrrev_b32 v24, 1, v23
v_lshlrev_b32 v24, 4, v24
v_and_b32 v25, 1, v23
v_lshl_add_u32 v24, v25, 2, v24
v_lshrrev_b32 v25, 2, v22
v_add_u32 v24, v24, v25
v_mul_u32_u24 v24, {TP}, v24
v_and_b32 v25, 3, v22
v_lshl_add_u32 v24, v25, 3, v24
v_add_u32 v{vQR}, s{sT0}, v24
v_add_u32 v{vXR}, {SH}, v{vL16}
v_lshlrev_b32 v24, 7, v23
v_add_u32 v24, {SH}, v24
v_and_b32 v25, 7, v22
v_lshl_add_u32 v{vSR}, v25, 4, v24
v_and_b32 v25, 8, v22
v_add_u32 v{vOW}, v25, v{vSR}
v_bfe_u32 v26, v21, 1, 1
v_mul_u32_u24 v24, {ESTR}, v23
v_lshrrev_b32 v25, 2, v22
v_mul_u32_u24 v25, {ESTR//4}, v25
v_add_u32 v24, v24, v25
v_and_b32 v25, 3, v21
v_lshl_add_u32 v{vPST}, v25, 4, v24
v_lshrrev_b32 v24, 1, v23
v_lshlrev_b32 v24, 6, v24
v_lshl_add_u32 v24, v25, 2, v24
v_and_b32 v25, 1, v23
v_lshl_add_u32 v{vMST}, v25, 4, v24
v_mov_b32 v24, 0x4444
v_mov_b32 v25, 0xeeee
v_cmp_eq_u32 vcc, 1, v26
s_nop 1
v_cndmask_b32 v{vIDX}, v24, v25, vcc
v_cmp_lt_u32 vcc, 7, v22
s_nop 1
v_cndmask_b32 v{vIDO}, v24, v25, vcc
""")
    for i in range(4): e(f"v_mov_b32 v{vONE+i}, 0x3f803f80")
    for j in range(2):
        e(f"""s_add_u32 s{sT0}, s{sH}, {j}
s_and_b32 s{sT0}, s{sT0}, 1
s_lshl_b32 s{sT1}, s{sWV}, 1
s_add_u32 s{sT0}, s{sT0}, s{sT1}
s_mul_i32 s{sT0}, s{sT0}, {4*ESTR}
s_lshr_b32 s{sT1}, s{sH}, 1
s_add_u32 s{sT1}, s{sT1}, {16*j}
s_lshl_b32 s{sT1}, s{sT1}, 6
s_add_u32 s{sT0}, s{sT0}, s{sT1}
s_add_u32 s{sP+j}, s{sT0}, {PART}""")
    e(f"""s_mul_i32 s{sG}, s{sH}, {ESTR}
s_mul_i32 s{sT0}, s{sWV}, {ESTR//4}
s_add_u32 s{sG}, s{sG}, s{sT0}
s_add_u32 s{sG}, s{sG}, {PART}
s_mov_b32 s{sMASK}, 0x000f000f
s_mov_b32 s{sMASK+1}, 0x000f000f
s_mov_b32 s{sTAG}, 1
s_mov_b32 s{sTADD}, {hex(f2u(1-TAGB))}
s_lshr_b32 s{sT1}, s{sH}, 2
s_lshl_b32 s{sT1}, s{sT1}, 10
s_and_b32 s{sT2}, s{sH}, 1
s_lshl_b32 s{sT2}, s{sT2}, 7
s_add_u32 s{sMSO}, s{sT1}, s{sT2}
s_and_b32 s{sT2}, s{sH}, 2
s_lshl_b32 s{sT2}, s{sT2}, 4
s_add_u32 s{sMSO}, s{sMSO}, s{sT2}
s_lshl_b32 s{sT2}, s{sWV}, 8
s_add_u32 s{sMSO}, s{sMSO}, s{sT2}
s_lshl_b32 s{sMGO}, s{sWV}, 11
s_mov_b32 s{sMC}, {MEMR}
s_mov_b32 s{sMN}, {MEMR+8192}
s_mov_b32 s{sMR}, {MEMR+16384}
s_mov_b32 s{sCQ}, {hex(f2u(128**-0.5*math.log2(math.e)))}
s_mov_b32 s{sTH}, {hex(f2u(2.0**cfg.get('thr',30.0)))}
s_lshl_b32 s{sJL}, s{sWV}, 8
s_add_u32 s{sJL}, s{sJL}, {SH+X_J}""")

def init_mail(e, cfg, st):
    for i in range(4): e(f"v_mov_b32 v{AQ+i}, 0")
    e(f"v_mov_b32 v{QE}, -1")
    for j in range(2): e(f"buffer_store_dwordx4 {vr(AQ,4)}, v{vPST}, {sr(sWS,4)}, s{sP+j} offen {st}")
    for so in (sMC, sMN, sMR):
        e(f"s_add_u32 s{sT0}, s{so}, s{sMSO}")
        e(f"buffer_store_dword v{QE}, v{vMST}, {sr(sWS,4)}, s{sT0} offen {st}")
    e(f"s_mul_i32 s{sT0}, s{sWV}, {TW}\nv_add_u32 v{QE+1}, s{sT0}, v{vXR}")
    for off in (0, TK-1024): e(f"ds_write_b128 v{QE+1}, {vr(AQ,4)} offset:{X_T+off}")
    e(f"""v_bfe_u32 v{AK}, v{vL16}, 7, 1
v_bfe_u32 v{AK+1}, v{vL16}, 4, 1
v_lshl_add_u32 v{AK}, v{AK+1}, 1, v{AK}
v_bfe_u32 v{AK+1}, v{vL16}, 5, 1
v_lshl_add_u32 v{AK}, v{AK+1}, 3, v{AK}
v_bfe_u32 v{AK+1}, v{vL16}, 6, 1
v_lshlrev_b32 v{AK+1}, 4, v{AK+1}
v_mov_b32 v{AK+2}, 0x3f80
v_lshlrev_b32 v{AK+1}, v{AK+1}, v{AK+2}""")
    for k in range(4):
        e(f"v_cmp_eq_u32 vcc, {k}, v{AK}\ns_nop 1\nv_cndmask_b32 v{AK+4+k}, 0, v{AK+1}, vcc")
    e(f"ds_write_b128 v{vXR}, {vr(AK+4,4)} offset:{X_SEL}")

def load_weights(e, cfg, hooks={}):
    vA, vB, vRq, vRo, T = 20, 21, 22, 23, 24
    e(f"""
v_lshrrev_b32 v40, 6, v{vL16}
v_and_b32 v41, 48, v{vL16}
v_lshl_add_u32 v{vA}, v40, 13, v41
v_lshl_add_u32 v{vB}, v40, 10, v41
v_bfe_u32 v40, v{vL16}, 6, 1
v_bfe_u32 v41, v{vL16}, 7, 1
v_bfe_u32 v42, v{vL16}, 8, 1
v_bfe_u32 v43, v{vL16}, 9, 1
v_bfe_u32 v44, v{vL16}, 4, 2
v_lshlrev_b32 v44, 3, v44
s_lshl_b32 s{sT0}, s{sWV}, 15
v_add_u32 v44, s{sT0}, v44
v_lshl_add_u32 v{vRq}, v40, 11, v44
v_lshl_add_u32 v{vRq}, v41, 10, v{vRq}
v_lshl_add_u32 v{vRq}, v42, 7, v{vRq}
v_lshl_add_u32 v{vRq}, v43, 8, v{vRq}
v_lshl_add_u32 v{vRo}, v40, 6, v44
v_lshl_add_u32 v{vRo}, v41, 5, v{vRo}
v_lshl_add_u32 v{vRo}, v42, 10, v{vRo}
v_lshl_add_u32 v{vRo}, v43, 8, v{vRo}
""")
    res = [(m, b) for m in 'qkvo' for b in range(8) if b not in STREAM[m]]
    stv = [(m, b) for m in 'qkvo' for b in STREAM[m]]
    order = res + stv
    cur = [None]
    toks = {}
    def issue(n):
        mat, b = order[n]
        if cur[0] != mat:
            off = {'q': A_WQ, 'k': A_WK, 'v': A_WV, 'o': A_WO}[mat]
            e(f"""s_load_dwordx2 {sr(sW,2)}, s[0:1], {off}
s_mov_b32 s{sW+2}, {4*1024*1024}
s_mov_b32 s{sW+3}, 0x20000
s_waitcnt lgkmcnt(0)""")
            cur[0] = mat
        if mat != 'o':
            e(f"""s_add_u32 s{sT0}, s{sWV}, {b>>1}
s_and_b32 s{sT0}, s{sT0}, 3
s_lshl_b32 s{sT0}, s{sT0}, 20
s_lshl_b32 s{sT1}, s{sH}, 8
s_add_u32 s{sT0}, s{sT0}, s{sT1}
s_lshl_b32 s{sT1}, s{sWV}, 6
s_add_u32 s{sT0}, s{sT0}, s{sT1}
s_add_u32 s{sT0}, s{sT0}, {(b&1)*64*8192}""")
            step, va = 16 * 8192, vA
        else:
            e(f"""s_add_u32 s{sT0}, s{sH}, {b>>2}
s_and_b32 s{sT0}, s{sT0}, 1
s_lshl_b32 s{sT0}, s{sT0}, 7
s_lshl_b32 s{sT1}, s{sH}, 17
s_add_u32 s{sT0}, s{sT0}, s{sT1}
s_lshl_b32 s{sT1}, s{sWV}, 8
s_add_u32 s{sT0}, s{sT0}, s{sT1}
s_add_u32 s{sT0}, s{sT0}, {(b&1)*64*1024+64*((b>>1)&1)}""")
            step, va = 16 * 1024, vB
        e(f"s_lshl_b32 s{sT1}, s{sWV}, 15")
        for i in range(4):
            e(f"s_add_u32 m0, s{sT1}, {(n%8)*4096+i*1024}")
            e(f"s_nop 0")
            toks[n] = e.vm(f"buffer_load_dwordx4 v{va}, {sr(sW,4)}, s{sT0} offen lds")
            if i < 3: e(f"s_add_u32 s{sT0}, s{sT0}, {step}")
    for n in range(8): issue(n)
    for n in range(32):
        mat, b = order[n]
        e.wvm(toks[n])
        for t in range(2):
            x = WM[(mat, b, t)]
            for qd in range(4):
                qrow = ((qd & 1) + 8 * (qd >> 1)) if mat != 'o' else (2 * (qd & 1) + 8 * (qd >> 1))
                dst = vr(T + 8 * t + 2 * qd, 2) if x[0] == 'L' else vr(x[1] + 2 * qd, 2, x[0])
                e(f"ds_read_b64_tr_b16 {dst}, v{vRq if mat!='o' else vRo} offset:{(n%8)*4096+qrow*64+(t*32 if mat!='o' else t*2048)}")
        e("s_waitcnt lgkmcnt(0)")
        if n >= 24:
            assert WM[(mat, b, 0)][2] == (n % 8) * 4096
            for k in range(4): e(f"ds_write_b128 v{vLW}, {vr(T+4*k,4)} offset:{(n%8)*4096+1024*k}")
        if n + 8 < 32: issue(n + 8)
        if n in hooks: hooks[n]()
    e("s_waitcnt lgkmcnt(0)")

def smf(mat, acc, b, t, a): return f"v_smfmac_f32_16x16x64_bf16 {vr(acc,4)}, {vr(a,4)}, {wop(mat,b,t)}, v{vIDX if mat!='o' else vIDO}"

def spin_check(e, abort):
    e(f"s_add_u32 s{sSPIN}, s{sSPIN}, 1\ns_cmp_gt_u32 s{sSPIN}, {1<<20}\ns_cbranch_scc1 {abort}")

def stamp(e, cfg, k):
    sl = cfg.get('stamp')
    if sl and k in sl:
        i = sl.index(k); e(f"s_memtime s[{74+2*i}:{75+2*i}]")

def nops(e, n):
    while n > 0:
        k = min(n, 16); e(f"s_nop {k-1}"); n -= k

def layer_pre(e, cfg, abort):
    W4 = sr(sWS, 4)
    e(f"""
s_mov_b32 s{sSTEP}, 0
s_mul_i32 s{sT0}, s{sLAYER}, {KV_L}
s_lshl_b32 s{sT1}, s{sH}, 14
s_add_u32 s{sT0}, s{sT0}, s{sT1}
s_lshl_b32 s{sT1}, s{sWV}, 12
s_add_u32 s{sT0}, s{sT0}, s{sT1}
s_add_u32 s{sKVC}, s{sT0}, {KV}
s_add_u32 s{sKVN}, s{sKVC}, {32*16384}
s_add_u32 s{sKVMAX}, s{sKVC}, {63*32*16384}
s_lshr_b32 s{sT0}, s{sT0}, 1
s_add_u32 s{sKM}, s{sT0}, {KM}
s_mov_b32 s{sVMP}, {JUNK}
s_lshl_b32 s{sT0}, s{sLAYER}, 5
s_add_u32 s{sT0}, s{sT0}, s{sH}
s_lshl_b32 s{sFKV}, s{sT0}, 8
s_add_u32 s{sFKV}, s{sFKV}, {F_KV}
s_add_u32 s{sFKVMAX}, s{sFKV}, {63*4}
s_lshl_b32 s{sFKM}, s{sT0}, 7
s_add_u32 s{sFKM}, s{sFKM}, {F_KM}
s_load_dwordx2 {sr(sW,2)}, s[0:1], {A_MEM0}
s_mov_b32 s{sW+2}, 8192
s_mov_b32 s{sW+3}, 0x20000
v_bfe_u32 v{AQ}, v{vL16}, 4, 1
v_bfe_u32 v{AQ+1}, v{vL16}, 6, 2
v_lshl_add_u32 v{AQ}, v{AQ+1}, 1, v{AQ}
v_lshlrev_b32 v{AQ}, 10, v{AQ}
v_bfe_u32 v{AQ+1}, v{vL16}, 5, 1
v_lshl_add_u32 v{AQ}, v{AQ+1}, 5, v{AQ}
v_bfe_u32 v{AQ+1}, v{vL16}, 8, 2
v_lshl_add_u32 v{AQ}, v{AQ+1}, 3, v{AQ}
s_lshl_b32 s{sT0}, s{sWV}, 8
s_mov_b32 s{sT1}, 0x05040100
s_mov_b32 s{sT2}, 0x07060302
s_waitcnt lgkmcnt(0)""")
    for c in range(2):
        for t in range(2):
            e(f"buffer_load_dwordx2 {vr(AK+4*c+2*t,2)}, v{AQ}, {sr(sW,4)}, s{sT0} offen offset:{128*c+64*t}")
    e("s_waitcnt vmcnt(0)")
    for c in range(2):
        for k in range(4):
            e(f"v_perm_b32 v{M+4*c+k}, v{AK+4*c+2+(k>>1)}, v{AK+4*c+(k>>1)}, s{sT1 if k%2==0 else sT2}")
    Lw0 = e.label('w0')
    e(f"{Lw0}:\nbuffer_load_dword v{QE}, off, {W4}, s{sFKV} sc1")
    spin_check(e, abort)
    e(f"s_waitcnt vmcnt(0)\nv_cmp_eq_u32 vcc, 0, v{QE}\ns_cbranch_vccnz {Lw0}")
    e(f"s_add_u32 s{sFKV}, s{sFKV}, 4")
    if cfg.get('prof'): e("s_memrealtime s[78:79]\ns_waitcnt lgkmcnt(0)")

def layer(e, cfg, st, abort, w, Ldone):
    W4 = sr(sWS, 4)
    Larr, Lpoll2, Lkvw, Lkvok, Lslow, Lback, Lexit = [e.label(x) for x in
        ('arr', 'poll2', 'kvw', 'kvok', 'slow', 'back', 'exit')]
    tok = {}
    def run(x):
        if x is None: return
        if callable(x): x()
        elif isinstance(x, (list, tuple)):
            for y in x: run(y)
        else: e(x)
    def slot(mf, s=None, d=None, v=None, nm=None):
        e(mf)
        if nm is not None and cfg.get('stamp') and nm in cfg['stamp']:
            stamp(e, cfg, nm)
            run(s)
        elif s is None and d is not None: e("s_nop 0")
        else: run(s)
        run(d); run(v)
    def D(name, txt): return lambda: tok.__setitem__(name, e.ds(txt))
    def VM(name, txt): return lambda: tok.__setitem__(name, e.vm(txt))
    def WD(name): return lambda: e.wds(tok[name])
    def WV(name): return lambda: e.wvm(tok[name])
    def LR(mat, k):
        x, hf = streamed(mat)[k]
        return lambda: tok.__setitem__((mat, k), lread(e, *x, hf))
    KP = QE
    vWARM, vCK = QE + 5, QE + 6
    vFLAG = KX + 2
    def kp_read():
        e(f"ds_read_b64_tr_b16 {vr(KP,2)}, v{vQR} offset:{TK}\nds_read_b64_tr_b16 {vr(KP+2,2)}, v{vQR} offset:{TK+8*TP}")
    def idle_prep():
        for i in range(0, 8, 2): e(f"v_mov_b64 {vr(AQ+i,2)}, 0")
        for i in range(0, 8, 2): e(f"v_mov_b64 {vr(AK+i,2)}, 0")
        e(f"v_lshlrev_b32 v{vWARM}, 3, v{vL16}")
        e(f"s_mov_b32 m0, s{sJL}")
    mo = lambda b: X_M + 1024 * ((2 * w + b) % 8)
    if w == 1:
        Lw1 = e.label('w1')
        e(f"{Lw1}:\nbuffer_load_dword v{vFLAG}, off, {W4}, s{sFKV} sc1")
        spin_check(e, abort)
        e(f"s_waitcnt vmcnt(0)\nv_cmp_eq_u32 vcc, 0, v{vFLAG}\ns_cbranch_vccnz {Lw1}")
    for k in range(8): LR('q', k)()
    kp_read()
    idle_prep()
    if cfg.get('time'): e(f"s_memtime {sr(sTM,2)}")
    e("s_waitcnt vmcnt(0) lgkmcnt(0)")
    e(f"s_branch {Larr}")
    if w == 1:
        e(f"{Lkvw}:\nbuffer_load_dword v{vFLAG}, off, {W4}, s{sFKV} sc1")
        spin_check(e, abort)
        e(f"s_waitcnt vmcnt(0)\nv_cmp_eq_u32 vcc, 0, v{vFLAG}\ns_cbranch_vccnz {Lkvw}\ns_branch {Lkvok}")
    def sweep2():
        e(f"buffer_load_dwordx4 {vr(M,4)}, v{vL16}, {W4}, s{sT3} offen sc1")
        e(f"buffer_load_dwordx4 {vr(M+4,4)}, v{vL16}, {W4}, s{sT3} offen offset:1024 sc1")
    D2 = cfg.get('D2', 1)
    e(f"{Lpoll2}:")
    sweep2()
    spin_check(e, abort)
    Lpoll2b = e.label('poll2b')
    e(f"""{Lpoll2b}:
s_waitcnt vmcnt({2*D2-1}) lgkmcnt(0)
v_max3_u32 v{vCK}, v{M}, v{M+1}, v{M+2}
v_max_u32 v{vCK}, v{vCK}, v{M+3}
s_waitcnt vmcnt({2*D2-2})
v_max3_u32 v{vCK}, v{vCK}, v{M+4}, v{M+5}
v_max3_u32 v{vCK}, v{vCK}, v{M+6}, v{M+7}
v_cmp_eq_u32 vcc, -1, v{vCK}
s_cbranch_vccnz {Lpoll2}
{Larr}:""")
    Q = lambda b, t: smf('q', AQ + 4 * t, b, t, M + 4 * b)
    K = lambda b, t: smf('k', AK + 4 * t, b, t, M + 4 * b)
    V = lambda b, t: smf('v', AV + 4 * t, b, t, M + 4 * b)
    MRD = lambda b: D(('m', b), f"ds_read_b128 {vr(M+4*b,4)}, v{vXR} offset:{mo(b)}")
    sk = f"buffer_store_dwordx4 {vr(KP,4)}, v{vL16}, {W4}, s{sVMP} offen sc1"
    sv = f"buffer_store_dwordx4 {vr(AV,4)}, v{vL16}, {W4}, s{sVMP} offen offset:1024 sc1"
    if cfg.get('nopub'): sk2 = sv2 = None
    else: sk2, sv2 = sk, sv
    kvl = lambda nm, r, off: VM(nm, f"buffer_load_dwordx4 {vr(r,4)}, v{vL16}, {W4}, s{sKVC} offen offset:{off} sc1")
    zv = lambda i: f"v_mov_b64 {vr(AV+2*i,2)}, 0"
    warm = None if cfg.get('nowarm') else f"buffer_load_dword v{vWARM}, {W4}, s{sKVN} offen sc1 lds"
    slot(Q(0, 0), None, f"ds_write_b128 v{vXR}, {vr(M,4)} offset:{mo(0)}", nm=0)
    slot(Q(0, 1), None, f"ds_write_b128 v{vXR}, {vr(M+4,4)} offset:{mo(1)}")
    slot(Q(1, 0), None, kvl('k0', KX, 0), kvl('kx', KX + 4, 1024))
    slot(Q(1, 1), None, kvl('v0', VX, 2048), kvl('vx', VX + 4, 3072))
    slot(K(0, 0), "s_waitcnt lgkmcnt(0)", "s_barrier", MRD(2))
    slot(K(0, 1), None, MRD(3), MRD(4) if w >= 2 else sk2, nm=1)
    slot(K(1, 0), None, MRD(4) if w < 2 else MRD(5), MRD(5) if w < 2 else sk2)
    slot(K(1, 1), None, MRD(6), WD(('m', 2)))
    slot(Q(2, 0), None, MRD(7), LR('q', 8), nm='q0')
    slot(Q(2, 1), WD(('m', 3)), LR('q', 9), sv2 if w == 0 else None)
    slot(Q(3, 0), None, LR('q', 10), sv2 if w == 1 else None)
    slot(Q(3, 1), WD(('m', 5)), LR('q', 11), sv2 if w == 2 else None)
    slot(Q(4, 0), None, LR('q', 12), sv2 if w == 3 else None, nm='q4')
    slot(Q(4, 1), None, LR('q', 13), zv(2))
    slot(Q(5, 0), None, LR('q', 14), zv(3))
    slot(Q(5, 1), WD(('q', 11)), LR('q', 15), zv(0))
    slot(Q(6, 0), "s_mov_b32 exec_hi, 0", warm, "s_mov_b32 exec_hi, -1", nm='q8')
    slot(Q(6, 1), WD(('q', 13)), LR('k', 0), zv(1))
    slot(Q(7, 0), WD(('q', 15)), LR('k', 1))
    slot(Q(7, 1), None, LR('k', 2), LR('k', 3), nm=2)
    SX, SM = AQ, AQ + 4
    KOP = AK; XR = KX; EX = AK + 4
    MR = [AQ, AQ + 2, AQ + 4, AQ + 6]
    SMS = AQ; EM = AK; LA = KX + 4; TMP = AK + 2
    OA = QE
    cvt = lambda d, a: f"v_cvt_pk_bf16_f32 v{d}, v{a}, v{a+1}"
    add = lambda d, a, b: f"v_add_f32 v{d}, v{a}, v{b}"
    mf32 = lambda d, a, b, c: f"v_mfma_f32_16x16x32_bf16 {vr(d,4)}, {vr(a,4)}, {vr(b,4)}, {vr(d,4) if c else 0}"
    mf16 = lambda d, a, b: f"v_mfma_f32_16x16x16_bf16 {vr(d,4)}, {vr(a,2)}, {vr(b,2)}, {vr(d,4)}"
    xo = lambda k: X_SX + 1024 * k + 512 * (w >> 1) + 4 * (w & 1)
    xr = lambda k: D(('x', k), f"ds_read_b32 v{XR+k}, v{vOW} offset:{xo(k)}")
    mr = lambda k: D(('mr', k), f"ds_read_b64 {vr(MR[k],2)}, v{vSR} offset:{X_SM+512*k}")
    def qp(t, k):
        a = AQ + 4 * t
        return [add(a, a, a + 2), add(a + 1, a + 1, a + 3), cvt(a, a)][k]
    trq = lambda nm, r, off: D(nm, f"ds_read_b64_tr_b16 {vr(r,2)}, v{vQR} offset:{off}")
    slot(K(2, 0), None, LR('k', 4), [qp(0, 0), qp(0, 1)])
    slot(K(2, 1), None, LR('k', 5), [qp(0, 2), qp(1, 0), qp(1, 1), qp(1, 2)])
    slot(K(3, 0), None, f"ds_write_b32 v{vQW}, v{AQ} offset:{TQ+24}")
    slot(K(3, 1), None, f"ds_write_b32 v{vQW}, v{AQ+4} offset:{TQ+24+16*TP}")
    slot(K(4, 0), None, trq('a', QE, TQ + 24), trq('b', QE + 2, TQ + 24 + 8 * TP), nm='k4')
    slot(K(4, 1), None, trq('c', QE + 4, TQ + 8), trq('qt', QE + 6, TQ + 8 + 8 * TP))
    slot(K(5, 0), None, LR('k', 6), LR('k', 7))
    hk = (None, None, None)
    if w == 1: hk = (f"s_add_u32 s{sFKV}, s{sFKV}, 4", f"s_min_u32 s{sFKV}, s{sFKV}, s{sFKVMAX}", None)
    if w == 2: hk = (f"s_sub_u32 s{sT1}, s{sSTEP}, 1", f"s_max_i32 s{sT1}, s{sT1}, 0", None)
    slot(K(5, 1), WD(('k', 5)), hk[0], hk[1])
    slot(K(6, 0), WV('kx'), WD('qt'))
    slot(mf32(SX, KX, QE, 0), nm='k9')
    slot(mf32(SX, KX + 4, QE + 4, 1), "s_nop 2")
    slot(K(6, 1), WD(('k', 7)), "s_nop 1")
    slot(K(7, 0), None, f"ds_write_b64 v{vOW}, {vr(SX,2)} offset:{X_SX+1024*w}")
    slot(K(7, 1), None, D('at', f"ds_write_b64 v{vOW}, {vr(SX+2,2)} offset:{X_SX+1024*w+512}"), nm=3)
    slot(V(0, 0), "s_nop 1", None, [cvt(AK, AK), cvt(AK + 1, AK + 2)], nm='v0')
    slot(V(0, 1), None, f"ds_write_b64 v{vKW}, {vr(AK,2)} offset:{TK}", [cvt(AK + 4, AK + 4), cvt(AK + 5, AK + 6)])
    slot(V(1, 0), None, f"ds_write_b64 v{vKW}, {vr(AK+4,2)} offset:{TK+16*TP}")
    slot(V(1, 1), None, trq('d', KOP, TK), trq('kt', KOP + 2, TK + 8 * TP), nm='v3')
    slot(V(2, 0), WD('at'), "s_barrier", xr(0))
    slot(V(2, 1), None, xr(1), xr(2))
    slot(V(3, 0), f"s_add_u32 s{sT0}, s{sMR}, s{sMSO}", xr(3), WD('kt'))
    slot(mf32(SM, KOP, QE, 0), None, None, [f"v_mov_b32 v{EM+1}, 0", f"v_mov_b32 v{AK+7}, -1"])
    slot(V(3, 1), f"s_mov_b64 exec, {sr(sMASK,2)}", f"buffer_store_dword v{AK+7}, v{vMST}, {W4}, s{sT0} offen {st}", "s_mov_b64 exec, -1", nm='v7')
    slot(V(4, 0), WD(('x', 3)), None, [add(SM, SM, SM + 2), add(SM + 1, SM + 1, SM + 3), add(XR, XR, XR + 1), add(XR + 2, XR + 2, XR + 3)])
    slot(V(4, 1), None, f"ds_write_b64 v{vOW}, {vr(SM,2)} offset:{X_SM+512*w}",
         [add(XR, XR, XR + 2), f"v_mul_f32 v{XR}, s{sCQ}, v{XR}", f"v_exp_f32 v{XR}, v{XR}", f"v_mov_b32 v{AK+6}, s{sT1}", f"v_cvt_pk_bf16_f32 v{XR}, v{XR}, v{XR}"])
    slot(V(5, 0), None, D('bt', f"ds_write_b16 v{vOW}, v{XR} offset:{X_E+2*w}"))
    if w == 1: slot(V(5, 1), None, f"buffer_load_dword v{vFLAG}, off, {W4}, s{sFKV} sc1", nm='v11')
    elif w == 2: slot(V(5, 1), "s_mov_b64 exec, 1", f"buffer_store_dword v{AK+6}, off, {W4}, s{sFKM} sc1", "s_mov_b64 exec, -1", nm='v11')
    else: slot(V(5, 1), nm='v11')
    slot(V(6, 0))
    slot(V(6, 1), WD('bt'), "s_barrier", mr(0))
    slot(V(7, 0), None, mr(1), mr(2))
    slot(V(7, 1), WV('vx'), mr(3), D('et', f"ds_read_b128 {vr(EX,4)}, v{vSR} offset:{X_E}"), nm='v15')
    oo = [2 * ((w + k) & 3) + hf for k in range(4) for hf in range(2)]
    run([LR('o', oo[0]), LR('o', oo[1])])
    e(f"s_cmp_eq_u32 s{sSTEP}, 63")
    run([cvt(AV, AV), cvt(AV + 1, AV + 2), cvt(AV + 2, AV + 4), cvt(AV + 3, AV + 6)])
    e(f"s_cbranch_scc1 {Lexit}")
    WD(('mr', 3))()
    run([add(MR[0] + r, MR[0] + r, MR[1] + r) for r in range(2)] + [add(MR[2] + r, MR[2] + r, MR[3] + r) for r in range(2)])
    WD('et')()
    slot(mf32(LA, vONE, EX, 0), None, None, [add(SMS + r, MR[0] + r, MR[2] + r) for r in range(2)])
    slot(mf32(OA, VX, EX, 0), None, None, [f"v_mul_f32 v{SMS+r}, s{sCQ}, v{SMS+r}" for r in range(2)])
    z = lambda i: f"v_mov_b64 {vr(M+2*i,2)}, 0"
    e(f"v_exp_f32 v{TMP}, v{SMS}\nv_exp_f32 v{TMP+1}, v{SMS+1}")
    e("s_nop 0")
    e(cvt(EM, TMP))
    slot(mf32(OA + 4, VX + 4, EX, 0), None, None, [z(0), z(1)], nm=4)
    def fin_o():
        slot(mf16(LA, vONE, EM), None, None, [f"v_mov_b32 v{EM+1}, v{EM}", z(2), "s_nop 0"])
        slot(mf16(OA, AV, EM), None, None, [z(3), z(4)])
        slot(mf16(OA + 4, AV + 2, EM), "s_nop 0", None, [f"v_rcp_f32 v{LA+2}, v{LA}", z(5), z(6), z(7)])
        pm = lambda r: f"v_pk_mul_f32 {vr(OA+r,2)}, {vr(OA+r,2)}, {vr(LA+2,2)} op_sel_hi:[1,0]"
        run([pm(0), pm(2), cvt(OA, OA), cvt(OA + 1, OA + 2), pm(4), pm(6), cvt(OA + 2, OA + 4), cvt(OA + 3, OA + 6)])
        e(f"ds_write_b128 v{vSR}, {vr(OA,4)} offset:{X_O+512*w}")
        e("s_nop 0")
    fin_o()
    stamp(e, cfg, 'ow')
    OP = [OA, VX, VX + 4, OA + 4]
    def O(p, k):
        ws = (w + k) & 3
        return smf('o', M + 4 * p, 2 * p + (ws >> 1), ws & 1, OP[k])
    upd = [f"s_mov_b32 s{sVMP}, s{sKM}", f"s_add_u32 s{sKM}, s{sKM}, {32*8192}",
           f"s_mov_b32 s{sKVC}, s{sKVN}", f"s_add_u32 s{sKVN}, s{sKVN}, {32*16384}",
           f"s_min_u32 s{sKVN}, s{sKVN}, s{sKVMAX}", f"s_add_u32 s{sSTEP}, s{sSTEP}, 1",
           f"s_add_u32 s{sT2}, s{sMN}, s{sMSO}", f"s_mov_b32 s{sT0}, s{sMC}", f"s_mov_b32 s{sMC}, s{sMN}",
           f"s_mov_b32 s{sMN}, s{sMR}", f"s_mov_b32 s{sMR}, s{sT0}", f"s_add_u32 s{sT3}, s{sMC}, s{sMGO}"]
    U = lambda: upd.pop(0) if upd else "s_nop 0"
    ord_ = lambda k: D(('or', k), f"ds_read_b128 {vr(OP[k],4)}, v{vSR} offset:{X_O+512*((w+k)&3)}")
    SEL = AV + 4
    PK = [M + 16, M + 20]
    tagm = lambda p: f"v_mul_f32 v{M+4*p}, s{sTADD}, v{M+4*p}"
    tago = lambda j: f"v_and_or_b32 v{PK[j]}, v{PK[j]}, -2, s{sTAG}"
    pc = lambda p, r: cvt(PK[p >> 1] + 2 * (p & 1) + r, M + 4 * p + 2 * r)
    pst = lambda j: f"buffer_store_dwordx4 {vr(PK[j],4)}, v{vPST}, {W4}, s{sP+j} offen {st}"
    slot(O(0, 0), None, None, f"v_max_f32 v{LA+1}, v{LA}, v{LA+2}")
    slot(O(1, 0), None, None, f"v_cmp_ngt_f32 vcc, s{sTH}, v{LA+1}")
    e(O(2, 0))
    e(f"s_cbranch_vccnz {Lslow}\n{Lback}:")
    e("s_waitcnt lgkmcnt(0)\ns_barrier")
    run([ord_(1), ord_(2)])
    slot(O(3, 0), None, ord_(3), LR('o', oo[2]), nm=5)
    run([LR('o', oo[3]), U(), U(), U(), U(), WD(('or', 1))])
    slot(O(0, 1), U(), LR('o', oo[4]), nm='o0')
    slot(O(1, 1), WD(('or', 2)), LR('o', oo[5]))
    slot(O(0, 2), WD(('or', 3)), LR('o', oo[6]))
    slot(O(0, 3), U(), LR('o', oo[7]), U())
    slot(O(1, 2), U(), f"ds_read_b128 {vr(SEL,4)}, v{vXR} offset:{X_SEL}", U())
    slot(O(1, 3), U(), U(), tagm(0))
    slot(O(2, 1), U(), U(), [pc(0, 0), pc(0, 1)], nm='o7')
    slot(O(2, 2), U(), U(), [pc(1, 0), pc(1, 1), tago(0)])
    slot(O(2, 3), "s_waitcnt lgkmcnt(0)", pst(0))
    slot(O(3, 1), U(), U(), U(), nm='o12')
    slot(O(3, 2), U(), U(), tagm(2))
    slot(O(3, 3), U(), U(), [pc(2, 0), pc(2, 1), tago(1), "s_nop 2", pc(3, 0), pc(3, 1)], nm='o15')
    assert not upd
    e(pst(1))
    stamp(e, cfg, 6)
    D1 = cfg.get('D1', 1)
    GS = [M + 8, M + 24, VX][:D1]
    RA, TA = KX + 4, QE + 6
    Lok = e.label('gok'); Lt = [e.label('gt') for _ in range(D1)]
    def gl1(k, j): e(f"buffer_load_dwordx4 {vr(GS[k]+4*j,4)}, v{vL16}, {W4}, s{sG} offen offset:{1024*j} sc1")
    def gl(k): gl1(k, 0); gl1(k, 1)
    def red(k, nm):
        for j in range(2):
            e(f"s_waitcnt vmcnt({2*D1-1-j})")
            stamp(e, cfg, f"{nm}{j}")
            e(mf32(RA, SEL, GS[k] + 4 * j, j))
            if j == 0: e(f"v_xor_b32 v{TA}, s{sTAG}, v{GS[k]}")
            else: e(f"v_bitop3_b32 v{TA}, v{TA}, v{GS[k]+4}, s{sTAG} bitop3:0xf6")
        e(f"v_and_b32 v{TA}, 1, v{TA}\nv_cmp_ne_u32 vcc, 0, v{TA}")
    for k in range(8): LR('q', k)()
    kp_read()
    if cfg.get('b4'): e("s_barrier")
    nops(e, cfg.get('d0', 0))
    stamp(e, cfg, 'i1')
    gl1(0, 0)
    nops(e, cfg.get('d1', 0))
    gl1(0, 1)
    idle_prep()
    used = 10
    if cfg.get('hist'):
        e(f"s_waitcnt lgkmcnt(0)\ns_mov_b32 m0, s{sSTEP}")
        for k in range(len(cfg['stamp'])): e(f"v_writelane_b32 v{240+k}, s{74+2*k}, m0")
        e(f"s_mov_b32 m0, s{sJL}")
        used += 3 + len(cfg['stamp'])
    for k in range(1, D1):
        nops(e, cfg.get('p1', 0) - used); gl(k); used = 0
    red(0, 'a')
    e(f"s_cbranch_vccnz {Lt[0]}")
    e("s_nop 3")
    e(f"{Lok}:")
    stamp(e, cfg, 7)
    e(f"""v_add_f32_dpp v{RA}, v{RA}, v{RA} row_ror:8 {DP}
v_add_f32_dpp v{RA+1}, v{RA+1}, v{RA+1} row_ror:8 {DP}
s_xor_b32 s{sTAG}, s{sTAG}, 1
v_add_f32_dpp v{RA}, v{RA}, v{RA} row_ror:4 {DP}
v_add_f32_dpp v{RA+1}, v{RA+1}, v{RA+1} row_ror:4 {DP}
v_cvt_pk_bf16_f32 v{TA}, v{RA}, v{RA+1}
v_min_u32 v{TA}, -2, v{TA}
s_mov_b64 exec, {sr(sMASK,2)}
buffer_store_dword v{TA}, v{vMST}, {W4}, s{sT2} offen {st}
s_mov_b64 exec, -1""")
    stamp(e, cfg, 8)
    e(f"s_xor_b32 s{sTADD}, s{sTADD}, {hex(f2u(1-TAGB)^f2u(1+TAGB))}")
    if w == 1: e(f"v_cmp_eq_u32 vcc, 0, v{vFLAG}\ns_cbranch_vccnz {Lkvw}\n{Lkvok}:")
    if cfg.get('b5'): e("s_barrier")
    nops(e, cfg.get('d2', 0))
    stamp(e, cfg, 'i2')
    for k in range(D2 - 1):
        sweep2(); nops(e, cfg.get('p2', 0))
    sweep2()
    e(f"s_branch {Lpoll2b}")
    for k in range(D1):
        e(f"{Lt[k]}:")
        gl(k)
        spin_check(e, abort)
        red((k + 1) % D1, 'b')
        e(f"s_cbranch_vccnz {Lt[(k+1)%D1]}\ns_nop 2\ns_branch {Lok}")
    R = M + 16; T0 = AQ + 4
    e(f"{Lslow}:")
    for k in range(4):
        for p in range(2): e(f"ds_read_b64 {vr(R+4*k+2*p,2)}, v{vOW} offset:{X_SX+1024*k+512*p}")
    e("s_waitcnt lgkmcnt(0)")
    for r in range(4):
        e(f"v_add_f32 v{R+r}, v{R+r}, v{R+4+r}\nv_add_f32 v{R+8+r}, v{R+8+r}, v{R+12+r}\nv_add_f32 v{R+r}, v{R+r}, v{R+8+r}\nv_mul_f32 v{R+r}, s{sCQ}, v{R+r}")
    e(f"""v_max3_f32 v{T0}, v{R}, v{R+1}, v{R+2}
v_max3_f32 v{T0}, v{T0}, v{R+3}, v{SMS}
v_max_f32 v{T0}, v{T0}, v{SMS+1}
s_nop 1
v_max_f32_dpp v{T0}, v{T0}, v{T0} row_ror:8 {DP}
v_mov_b32 v{T0+1}, v{T0}
s_nop 1
v_permlane16_swap_b32 v{T0}, v{T0+1}
v_max_f32 v{T0}, v{T0}, v{T0+1}
v_mov_b32 v{T0+1}, v{T0}
s_nop 1
v_permlane32_swap_b32 v{T0}, v{T0+1}
v_max_f32 v{T0}, v{T0}, v{T0+1}""")
    for r in range(4): e(f"v_sub_f32 v{R+r}, v{R+r}, v{T0}")
    for r in range(2): e(f"v_sub_f32 v{TMP+r}, v{SMS+r}, v{T0}")
    for r in range(4): e(f"v_exp_f32 v{R+r}, v{R+r}")
    for r in range(2): e(f"v_exp_f32 v{TMP+r}, v{TMP+r}")
    e(f"""v_cvt_pk_bf16_f32 v{R+4}, v{R}, v{R+1}
v_cvt_pk_bf16_f32 v{R+5}, v{R+2}, v{R+3}
v_cvt_pk_bf16_f32 v{EM}, v{TMP}, v{TMP+1}
v_mov_b32 v{EM+1}, 0
v_mov_b64 {vr(EX,2)}, {vr(R+4,2)}
v_mov_b64 {vr(EX+2,2)}, {vr(R+4,2)}
s_nop 1
v_mov_b32_dpp v{EX}, v{R+4} row_ror:8 row_mask:0xf bank_mask:0xc
v_mov_b32_dpp v{EX+1}, v{R+5} row_ror:8 row_mask:0xf bank_mask:0xc
v_mov_b32_dpp v{EX+2}, v{R+4} row_ror:8 row_mask:0xf bank_mask:0x3
v_mov_b32_dpp v{EX+3}, v{R+5} row_ror:8 row_mask:0xf bank_mask:0x3
s_nop 1
v_mfma_f32_16x16x32_bf16 {vr(LA,4)}, {vr(vONE,4)}, {vr(EX,4)}, 0
v_mfma_f32_16x16x32_bf16 {vr(OA,4)}, {vr(VX,4)}, {vr(EX,4)}, 0
v_mfma_f32_16x16x32_bf16 {vr(OA+4,4)}, {vr(VX+4,4)}, {vr(EX,4)}, 0
{z(0)}
{z(1)}
s_nop 3""")
    fin_o()
    run([O(0, 0), O(1, 0), O(2, 0)])
    e(f"s_branch {Lback}")
    e(f"{Lexit}:\ns_mov_b32 s{sVMP}, s{sKM}")
    kp_read()
    e(f"""{sv}
s_waitcnt lgkmcnt(0)
{sk}
s_waitcnt vmcnt(0)
v_mov_b32 v{KX}, 64
s_barrier""")
    if w == 2: e(f"s_mov_b64 exec, 1\nbuffer_store_dword v{KX}, off, {W4}, s{sFKM} sc1\ns_mov_b64 exec, -1")
    if cfg.get('time'): e(f"s_memtime {sr(sTM+2,2)}\ns_waitcnt lgkmcnt(0)")
    e(f"s_branch {Ldone}")

def layer_all(e, cfg, st, abort):
    DIAG[0] = bool(cfg.get('hist'))
    layer_pre(e, cfg, abort)
    Ls = [e.label(f'wv{w}') for w in range(4)]
    Ldone = e.label('ldone')
    for w in range(1, 4): e(f"s_cmp_eq_u32 s{sWV}, {w}\ns_cbranch_scc1 {Ls[w]}")
    for w in range(4):
        e(f"{Ls[w]}:")
        layer(e, cfg, st, abort, w, Ldone)
    e(f"{Ldone}:")
```

```python
import sys
from common import *
import team as T, r1, mid, r4, asmcheck
NAME = "interleave_layers__memory_aug_recurrent_mem_tr__softmax_full_mha__prompt"
vRK = 126

def verify(e, t):
    Lp, Lok, Lgo = e.label('vp'), e.label('vok'), e.label('vgo')
    e(f"""s_cmp_lg_u32 s{sVER}, 0
s_cbranch_scc1 {Lok}
v_and_b32 v{t+2}, 0xf0, v0
{Lp}:
global_load_dwordx2 {vr(t,2)}, v{t+2}, {sr(sDBG,2)} sc1
s_waitcnt vmcnt(0)
v_lshrrev_b32 v{t+3}, 8, v{t+1}""")
    for mod in ("quad_perm:[1,0,3,2]", "quad_perm:[2,3,0,1]", "row_half_mirror", "row_mirror"):
        e(f"s_nop 1\nv_add_u32_dpp v{t+3}, v{t+3}, v{t+3} {mod} {DP}")
    e(f"v_cmp_ne_u32 vcc, 0x100, v{t+3}\ns_cbranch_vccz {Lgo}")
    spin(e)
    e(f"""s_sleep 2
s_branch {Lp}
{Lgo}:
s_mov_b32 s{sVER}, 1
v_cmp_ne_u32 vcc, -1, v{t}
s_and_b32 s{sT0}, vcc_lo, 0x5555
v_cmp_ne_u32 vcc, 0x2000, v{t+1}
s_and_b32 s{sT1}, vcc_lo, 0x5555
s_or_b32 s{sT0}, s{sT0}, s{sT1}
s_cbranch_scc0 {Lok}
v_lshrrev_b32 v{t+3}, 8, v{t+1}
v_cmp_ne_u32 vcc, 32, v{t+3}
s_and_b32 s{sSLOW}, vcc_lo, 0x5555
s_branch L_redo
{Lok}:""")

def gen(cfg):
    e = E()
    k = NAME + "_kernel"
    e(f"""{k}:
s_cmp_ge_u32 s2, 256
s_cbranch_scc1 L_end
s_load_dwordx2 {sr(sWS,2)}, s[0:1], {A_WS}
s_load_dwordx2 {sr(sDBG,2)}, s[0:1], {A_DBG}
s_mov_b32 s{sWS+2}, {WS_BYTES}
s_mov_b32 s{sWS+3}, 0x20000
s_getreg_b32 s{sXCC}, hwreg(HW_REG_XCC_ID)
s_and_b32 s{sXCC}, s{sXCC}, 15
v_lshrrev_b32 v1, 6, v0
v_and_b32 v0, 63, v0
v_readfirstlane_b32 s{sWV}, v1
v_lshlrev_b32 v0, 4, v0
s_mov_b32 s{sSPIN}, 0
s_mov_b32 s{sVER}, 0
s_mov_b32 s{sSLOW}, 0
s_lshr_b32 s{sT0}, s2, 3
s_and_b32 s{sIDX}, s{sXCC}, 7
s_lshl_b32 s{sIDX}, s{sIDX}, 5
s_add_u32 s{sIDX}, s{sIDX}, s{sT0}
v_mov_b32 v{vRK}, 0
v_mov_b32 v{vRK+1}, 0
s_waitcnt lgkmcnt(0)""")
    if cfg.get('prof'): e("s_memrealtime s[70:71]\ns_waitcnt lgkmcnt(0)")
    e(f"""s_cmp_eq_u32 s{sWV}, 3
s_cbranch_scc0 L_dispatch
v_mov_b64 v[4:5], 0
v_mov_b64 v[6:7], 0
s_mul_i32 s{sT1}, s2, 640
s_mov_b32 exec_hi, 0xff
buffer_store_dwordx4 v[4:7], v0, {W4}, s{sT1} offen sc1
s_lshl_b32 s{sT0}, 1, s{sT0}
s_lshl_b32 s{sT1}, s{sXCC}, 5
s_lshr_b32 s{sT2}, s{sXCC}, 3
s_lshl_b32 s{sT2}, s{sT2}, 4
s_and_b32 s{sT1}, s{sT1}, 0xe0
s_or_b32 s{sT1}, s{sT1}, s{sT2}
s_mov_b64 exec, 1
v_mov_b32 v2, s{sT0}
v_mov_b32 v3, 0x100
v_mov_b32 v1, s{sT1}
s_waitcnt vmcnt(0)
global_atomic_add_x2 {vr(vRK,2)}, v1, v[2:3], {sr(sDBG,2)} sc0 sc1
s_mov_b64 exec, -1
s_branch L_dispatch
L_redo:
v_mov_b32 v1, 0
s_waitcnt vmcnt(0) lgkmcnt(0)
s_barrier
s_cmp_eq_u32 s{sWV}, 3
s_cbranch_scc0 L_redo2
s_mov_b64 exec, 1
ds_write_b32 v1, v{vRK+1}
s_mov_b64 exec, -1
s_waitcnt lgkmcnt(0)
L_redo2:
s_barrier
ds_read_b32 v2, v1
s_waitcnt lgkmcnt(0)
v_readfirstlane_b32 s{sT0}, v2
s_barrier
s_lshr_b32 s{sT0}, s{sT0}, 8
s_and_b32 s{sT0}, s{sT0}, 31
s_and_b32 s{sIDX}, s{sXCC}, 7
s_lshl_b32 s{sIDX}, s{sIDX}, 5
s_add_u32 s{sIDX}, s{sIDX}, s{sT0}
s_cmp_lg_u32 s{sSLOW}, 0
s_cselect_b32 s{sIDX}, s2, s{sIDX}
L_dispatch:""")
    if cfg.get('forceslow'): e(f"s_mov_b32 s{sSLOW}, 1\ns_mov_b32 s{sIDX}, s2")
    e(f"""s_cmp_lt_u32 s{sIDX}, 32
s_cbranch_scc1 L_team
s_cmp_lt_u32 s{sIDX}, 128
s_cbranch_scc1 L_r1
s_cmp_ge_u32 s{sIDX}, 192
s_cbranch_scc1 L_r4
s_and_b32 s{sT0}, s{sIDX}, 16
s_cbranch_scc1 L_rg""")
    mid.g1_init(e); verify(e, 100); mid.g1_run(e, cfg); e("s_branch L_fin")
    e("L_rg:"); mid.rg_init(e); verify(e, 100); mid.rg_run(e, cfg); e("s_branch L_fin")
    e("L_r4:"); r4.init(e); verify(e, 100); r4.run(e, cfg); e("s_branch L_fin")
    e(f"""{ABORT}:
s_mov_b64 exec, -1
s_waitcnt vmcnt(0) lgkmcnt(0)
v_mov_b32 v1, 0
s_lshl_b32 s{sT0}, s{sIDX}, 16
s_or_b32 s{sT0}, s{sT0}, 0xdead
v_mov_b32 v2, s{sT0}
global_store_dword v1, v2, {sr(sDBG,2)} offset:24
s_branch L_end
L_fin:""")
    if cfg.get('prof'):
        e(f"""s_memrealtime s[72:73]
s_lshl_b32 s{sT0}, s{sIDX}, 4
s_add_u32 s{sT0}, s{sT0}, {DIAGB}
s_waitcnt lgkmcnt(0)
v_mov_b32 v2, s70
v_mov_b32 v3, s72
buffer_store_dwordx2 v[2:3], off, {W4}, s{sT0}""")
    e("L_end:\ns_endpgm")
    e("L_r1:"); r1.init(e); verify(e, 100); r1.run(e, cfg); e("s_branch L_fin")
    e(f"L_team:\ns_mov_b32 s{T.sH}, s{sIDX}")
    T.setup(e, cfg)
    def h0():
        verify(e, 100)
        T.init_mail(e, cfg, 'sc1')
    def h1():
        e(f"s_lshl_b32 s{sT0}, s{T.sH}, 2\ns_add_u32 s{sT0}, s{sT0}, s{sWV}\ns_lshl_b32 s{sT0}, s{sT0}, 2\ns_add_u32 s{sT0}, s{sT0}, {F_TB}")
        set_flag(e, 100, sT0)
    T.load_weights(e, cfg, {6: h0, 16: h1})
    e(f"v_lshrrev_b32 v101, 2, v0\ns_mov_b32 s{sT0}, {F_TB}")
    wait_flags(e, 100, 101, sT0); wait_flags(e, 100, 101, sT0, imm=256)
    e(f"s_barrier\ns_mov_b32 s{T.sLAYER}, 0\ns_cmp_lg_u32 s{sSLOW}, 0\ns_cbranch_scc1 L_tslow")
    for nm, st in (("L_tfast", ''), ("L_tslow", 'sc1')):
        e(f"{nm}:")
        if cfg.get('prof'): e(f"s_memrealtime s[74:75]\ns_waitcnt lgkmcnt(0)")
        T.layer_all(e, cfg, st, ABORT)
        if cfg.get('prof'):
            e(f"""s_memrealtime s[76:77]
s_lshl_b32 s{sT0}, s{T.sLAYER}, 5
s_add_u32 s{sT0}, s{sT0}, s{T.sH}
s_lshl_b32 s{sT0}, s{sT0}, 4
s_add_u32 s{sT0}, s{sT0}, {DIAGB+4096}
s_waitcnt lgkmcnt(0)
v_mov_b32 v{T.AQ}, s74
v_mov_b32 v{T.AQ+1}, s78
v_mov_b32 v{T.AQ+2}, s76
v_mov_b32 v{T.AQ+3}, s{sSPIN}
buffer_store_dwordx4 {vr(T.AQ,4)}, off, {W4}, s{sT0}
s_waitcnt vmcnt(0)""")
        e(f"s_add_u32 s{T.sLAYER}, s{T.sLAYER}, 1\ns_cmp_lt_u32 s{T.sLAYER}, 2\ns_cbranch_scc1 {nm}\ns_branch L_fin")
    body = e.text()
    hdr = open(f"cdna_kernels/{NAME}.s.ref").read().split("; Override launch geometry")[0]
    return f"""{hdr}; Generated by a hand-written Python emitter: persistent dataflow kernel, one workgroup per CU, roles by index.
; @launch grid=(256,1,1) block=(256,1,1) lds=163840
.amdgcn_target "amdgcn-amd-amdhsa--gfx950"
.text
.globl {k}
.p2align 8
.type {k},@function
{body}
.section .rodata,"a"
.p2align 6
.amdhsa_kernel {k}
  .amdhsa_next_free_vgpr 512
  .amdhsa_next_free_sgpr 102
  .amdhsa_accum_offset 256
  .amdhsa_group_segment_fixed_size 0
  .amdhsa_kernarg_size 104
  .amdhsa_user_sgpr_count 2
  .amdhsa_user_sgpr_kernarg_segment_ptr 1
  .amdhsa_system_sgpr_workgroup_id_x 1
.end_amdhsa_kernel
"""
DEF = dict(estr=8192, D1=2, D2=2, p2=30, p1=30, d0=30, d1=12, d2=4, b5=1, b4=1)
if __name__ == '__main__':
    cfg = dict(DEF)
    if len(sys.argv) > 2: cfg.update(eval(sys.argv[2]))
    out = sys.argv[1] if len(sys.argv) > 1 else f"cdna_kernels/{NAME}.s"
    c2 = dict(cfg); c2['D2'] = 1
    asmcheck.check(gen(c2))
    asm = gen(cfg)
    open(out, 'w').write(asm)
    print("bytes", len(asm))
```
